```python
import torch

def _softmax(x, axis=-1):
    return torch.softmax(x, dim=axis)
def _gelu(x):
    return torch.nn.functional.gelu(x, approximate="tanh")
def _silu(x):
    return torch.nn.functional.silu(x)
def _sigmoid(x):
    return torch.sigmoid(x)
def _layernorm(x, axis=-1, eps=1e-5):
    m = x.mean(dim=axis, keepdim=True)
    v = x.var(dim=axis, keepdim=True, unbiased=False)
    return (x - m) / torch.sqrt(v + eps)
def _scatter_add(tgt, idx, src, axis=0):
    return tgt.clone().index_add_(axis, idx, src)
def _segment_sum(src, seg, n):
    out = torch.zeros((n,) + src.shape[1:], dtype=src.dtype)
    return out.index_add_(0, seg, src)
def _pad(x, pw):
    flat = tuple(v for pair in reversed(pw) for v in pair)
    return torch.nn.functional.pad(x, flat)

kernel_name = 'gated_mix__linear_attn_block__swiglu_ffn__prompt'

def setup_inputs():

    _w = (lambda a: (lambda t: t.to(torch.bfloat16) if t.is_floating_point() else t)(torch.as_tensor(a)))
    def _A_setup():
        B, S, D = 1, 2048, 576
        return {
            "x": _w((lambda *s: torch.randn(*s, dtype=torch.bfloat16) * 0.05)(B, S, D)),
            "wqkv": _w((lambda *s: torch.randn(*s, dtype=torch.bfloat16) * 0.8)(D, 3 * D)),
            "wo": _w((lambda *s: torch.randn(*s, dtype=torch.bfloat16) * 0.05)(D, D)),
        }
    _A_in = _A_setup()

    def _B_setup():
        B, S, D, F = 1, 2048, 576, 4608
        return {
            "x": _w((lambda *s: torch.randn(*s, dtype=torch.bfloat16) * 0.05)(B, S, D)),
            "w_gate": _w((lambda *s: torch.randn(*s, dtype=torch.bfloat16) * 0.05)(D, F)),
            "w_up": _w((lambda *s: torch.randn(*s, dtype=torch.bfloat16) * 0.05)(D, F)),
            "w_down": _w((lambda *s: torch.randn(*s, dtype=torch.bfloat16) * 0.05)(F, D)),
        }
    _B_in = _B_setup()

    return {
        "A_x": _A_in["x"],
        "A_wqkv": _A_in["wqkv"],
        "A_wo": _A_in["wo"],
        "B_x": _B_in["x"],
        "B_w_gate": _B_in["w_gate"],
        "B_w_up": _B_in["w_up"],
        "B_w_down": _B_in["w_down"],
        "gate_w": _w((lambda *s: torch.randn(*s, dtype=torch.bfloat16) * 0.05)(576) * 16.0),
    }

def reference(A_x, A_wqkv, A_wo, B_x, B_w_gate, B_w_up, B_w_down, gate_w):
    def _A_ref(x, wqkv, wo):
        B, S, D = x.shape
        H = 32; Dh = D // H
        qkv = (lambda x, *d: x.permute(*d))((x @ wqkv).reshape(B, S, 3, H, Dh), 2, 0, 3, 1, 4)
        q, k, v = qkv[0], qkv[1], qkv[2]
        phi = lambda t: torch.where(t > 0, t + 1, torch.exp(t)) + 1e-6
        pq, pk = phi(q), phi(k)
        kv = torch.einsum("bhsd,bhse->bhde", pk, v)
        z = torch.einsum("bhsd->bhd", pk)
        num = torch.einsum("bhqd,bhde->bhqe", pq, kv)
        den = torch.einsum("bhqd,bhd->bhq", pq, z)[..., None] + 1e-6
        o = num / den
        return (lambda x, *d: x.permute(*d))(o, 0, 2, 1, 3).reshape(B, S, D) @ wo

    def _B_ref(x, w_gate, w_up, w_down):
        g = _silu(x @ w_gate)
        u = x @ w_up
        return (g * u) @ w_down

    x = A_x
    g = _sigmoid((x * gate_w).sum(-1, keepdims=True))
    a = _A_ref(x, A_wqkv, A_wo)
    b = _B_ref(x, B_w_gate, B_w_up, B_w_down)
    return g * a + (1 - g) * b
```

```python
import re

REG_RE = re.compile(r'(?<![\w.])([vas])(\d+)(?![\w\[])|(?<![\w.])([vas])\[(\d+):(\d+)\]|\b(vcc|exec|m0)\b')

TRANS = ('v_exp_f32', 'v_log_f32', 'v_rcp_f32', 'v_rsq_f32', 'v_sqrt_f32', 'v_sin_f32', 'v_cos_f32')


def regs_of(op):
    out = []
    for m in REG_RE.finditer(op):
        if m.group(1):
            out.append((m.group(1), int(m.group(2))))
        elif m.group(3):
            for i in range(int(m.group(4)), int(m.group(5)) + 1):
                out.append((m.group(3), i))
        else:
            name = m.group(6)
            if name == 'vcc':
                out += [('x', 'vcc')]
            elif name == 'exec':
                out += [('x', 'exec')]
            else:
                out += [('x', 'm0')]
    return out


class Inst:
    __slots__ = ('text', 'kind', 'w', 'r', 'tok', 'need_vm', 'need_lgkm', 'passes', 'wide_store', 'cost',
                 'srcc', 'opaque', 'comment', 'notrack')

    def __init__(self, text):
        self.text = text
        self.tok = None
        self.need_vm = []
        self.need_lgkm = []
        self.passes = 0
        self.wide_store = False
        self.srcc = set()
        self.opaque = False
        self.comment = None
        self.notrack = False
        parse(self)


class Token:
    __slots__ = ('done', 'seq', 'cls')

    def __init__(self, cls):
        self.cls = cls
        self.seq = None
        self.done = False


def split_ops(s):
    ops, depth, cur = [], 0, ''
    for ch in s:
        if ch == '[':
            depth += 1
        elif ch == ']':
            depth -= 1
        if ch == ',' and depth == 0:
            ops.append(cur.strip())
            cur = ''
        else:
            cur += ch
    if cur.strip():
        ops.append(cur.strip())
    return ops


def parse(I):
    t = I.text.strip()
    I.w, I.r = set(), set()
    I.cost = 4
    if t.endswith(':') or t.startswith('.') or t == '':
        I.kind = 'label'
        I.cost = 0
        return
    parts = t.split(None, 1)
    mn = parts[0]
    rest = parts[1] if len(parts) > 1 else ''
    ops = split_ops(rest)
    allr = [set(regs_of(o)) for o in ops]

    def rd(idx):
        for i in idx:
            if i < len(allr):
                I.r |= allr[i]

    def wr(idx):
        for i in idx:
            if i < len(allr):
                I.w |= allr[i]
    n = len(ops)
    if mn.startswith('v_mfma'):
        I.kind = 'mfma'
        I.passes = 8 if '32x32' in mn else 4
        wr([0]); rd([1, 2, 3])
        I.srcc = set(allr[3])
        I.cost = 8
    elif mn.startswith('ds_read') or mn.startswith('ds_bpermute') or mn.startswith('ds_swizzle'):
        I.kind = 'ds_read'
        wr([0]); rd(range(1, n))
    elif mn.startswith('ds_write') or mn.startswith('ds_add'):
        I.kind = 'ds_write'
        rd(range(n))
    elif mn.startswith('buffer_load') or mn.startswith('global_load'):
        if re.search(r'\blds\b', rest):
            I.kind = 'dma'
            rd(range(n)); I.r.add(('x', 'm0'))
        else:
            I.kind = 'vload'
            wr([0]); rd(range(1, n))
    elif mn.startswith('buffer_store') or mn.startswith('global_store'):
        I.kind = 'vstore'
        rd(range(n))
        I.wide_store = ('x4' in mn) or ('x3' in mn)
    elif mn.startswith('buffer_atomic'):
        I.kind = 'vstore'
        rd(range(n))
    elif mn in ('buffer_inv', 'buffer_wbl2'):
        I.kind = 'vstore'
    elif mn == 's_waitcnt':
        I.kind = 'wait'
    elif mn == 's_barrier':
        I.kind = 'barrier'
    elif mn == 's_nop':
        I.kind = 'nop'
    elif mn.startswith('s_cbranch') or mn == 's_branch' or mn == 's_endpgm':
        I.kind = 'branch'
        if 'scc' in mn:
            I.r.add(('x', 'scc'))
        if 'vcc' in mn:
            I.r.add(('x', 'vcc'))
        if 'exec' in mn:
            I.r.add(('x', 'exec'))
    elif mn.startswith('s_load') or mn.startswith('s_memtime') or mn.startswith('s_memrealtime'):
        I.kind = 'smem'
        wr([0]); rd(range(1, n))
    elif mn.startswith('s_cmp') or mn.startswith('s_bitcmp'):
        I.kind = 'salu'
        rd(range(n)); I.w.add(('x', 'scc'))
    elif mn == 's_getpc_b64':
        I.kind = 'salu'
        wr([0])
    elif mn == 's_setprio' or mn == 's_sleep':
        I.kind = 'salu'
    elif mn.startswith('s_'):
        I.kind = 'salu'
        wr([0]); rd(range(1, n))
        if mn.startswith('s_cselect') or mn.startswith('s_addc') or mn.startswith('s_subb'):
            I.r.add(('x', 'scc'))
        if 'saveexec' in mn:
            I.w.add(('x', 'exec')); I.r.add(('x', 'exec'))
        if not (mn.startswith('s_mov') or mn.startswith('s_cselect') or mn.startswith('s_mul')):
            I.w.add(('x', 'scc'))
    elif mn.startswith('v_cmp'):
        I.kind = 'valu'
        wr([0]); rd(range(1, n))
    elif mn.startswith('v_readfirstlane') or mn.startswith('v_readlane'):
        I.kind = 'valu'
        wr([0]); rd(range(1, n))
    elif mn.startswith('v_permlane'):
        I.kind = 'valu'
        wr([0, 1]); rd([0, 1])
    elif mn.startswith('v_'):
        I.kind = 'valu'
        wr([0]); rd(range(1, n))
        base = mn.replace('_e32', '').replace('_e64', '')
        if base in TRANS:
            I.kind = 'trans'
            I.cost = 8
        if base.startswith('v_fmac') or base.startswith('v_dot2c'):
            rd([0])
        if base == 'v_cndmask_b32' and n == 3:
            I.r.add(('x', 'vcc'))
        if base.startswith('v_add_co') or base.startswith('v_addc_co') or base.startswith('v_sub_co'):
            wr([1])
    else:
        raise ValueError('unknown mnemonic: ' + t)


def is_vreg(x):
    return x[0] in ('v', 'a')


class Prog:
    def __init__(self):
        self.ins = []

    def emit(self, text, tok=None, vm=None, lgkm=None, comment=None):
        outs = []
        for line in text.split('\n'):
            line = line.strip()
            if not line:
                continue
            I = Inst(line)
            outs.append(I)
        if tok is not None:
            outs[-1].tok = tok
        if vm:
            outs[0].need_vm = list(vm)
        if lgkm:
            outs[0].need_lgkm = list(lgkm)
        if comment:
            outs[0].comment = comment
        self.ins += outs
        return outs

    def add(self, insts):
        self.ins += insts

    def raw(self, text):
        for line in text.split('\n'):
            line = line.strip()
            if not line:
                continue
            I = Inst(line)
            I.opaque = True
            self.ins.append(I)


def mk(text, tok=None, vm=None, lgkm=None):
    p = Prog()
    return p.emit(text, tok=tok, vm=vm, lgkm=lgkm)


VM_KINDS = ('vload', 'vstore', 'dma')
LG_KINDS = ('ds_read', 'ds_write')


def insert_waits(ins):
    out = []
    vmq, lgq = [], []
    pend = {}
    stats = {'vm': 0, 'lg': 0}

    def retire(q, upto):
        for e in q[:upto + 1]:
            for r in e['regs']:
                if pend.get(r) is e:
                    del pend[r]
            if e['tok'] is not None:
                e['tok'].done = True
        del q[:upto + 1]

    for I in ins:
        if I.opaque:
            out.append(I)
            continue
        need_vm, need_lg = -1, -1
        if I.kind not in ('label',):
            touched = set(r for r in ((I.r | I.w) if not I.notrack else I.r) if is_vreg(r))
            for r in touched:
                e = pend.get(r)
                if e is None:
                    continue
                if e['cls'] == 'vm':
                    need_vm = max(need_vm, vmq.index(e))
                else:
                    need_lg = max(need_lg, lgq.index(e))
        for tk in I.need_vm:
            if tk.done:
                continue
            idx = [i for i, e in enumerate(vmq) if e['tok'] is tk]
            assert idx, 'vm token not issued yet: ' + I.text
            need_vm = max(need_vm, idx[0])
        for tk in I.need_lgkm:
            if tk.done:
                continue
            idx = [i for i, e in enumerate(lgq) if e['tok'] is tk]
            assert idx, 'lgkm token not issued yet: ' + I.text
            need_lg = max(need_lg, idx[0])
        w = []
        if need_vm >= 0:
            n = len(vmq) - 1 - need_vm
            n = min(n, 63)
            retire(vmq, len(vmq) - 1 - n)
            w.append(f'vmcnt({n})')
            stats['vm'] += 1
        if need_lg >= 0:
            n = len(lgq) - 1 - need_lg
            n = min(n, 15)
            retire(lgq, len(lgq) - 1 - n)
            w.append(f'lgkmcnt({n})')
            stats['lg'] += 1
        if w:
            out.append(Inst('s_waitcnt ' + ' '.join(w)))
        if I.kind == 'wait':
            m = re.search(r'vmcnt\((\d+)\)', I.text)
            if m:
                n = int(m.group(1))
                if len(vmq) > n:
                    retire(vmq, len(vmq) - 1 - n)
            m = re.search(r'lgkmcnt\((\d+)\)', I.text)
            if m:
                n = int(m.group(1))
                if len(lgq) > n:
                    retire(lgq, len(lgq) - 1 - n)
        if I.kind == 'smem':
            pass
        out.append(I)
        if I.kind in VM_KINDS:
            regs = set(r for r in I.w if is_vreg(r)) if not I.notrack else set()
            e = {'cls': 'vm', 'regs': regs, 'tok': I.tok}
            vmq.append(e)
            assert len(vmq) <= 63, 'more than 63 vector-memory operations in flight at: ' + I.text
            for r in regs:
                pend[r] = e
        elif I.kind in LG_KINDS:
            regs = set(r for r in I.w if is_vreg(r))
            e = {'cls': 'lg', 'regs': regs, 'tok': I.tok}
            lgq.append(e)
            for r in regs:
                pend[r] = e
            if len(lgq) > 15:
                pass
    return out, stats


def insert_nops(ins):
    out = []
    pos = 0
    last_valu_w = {}
    last_trans_w = {}
    last_mfma_w = {}
    last_mfma_c = {}
    last_valu_sw = {}
    last_salu_m0 = -100
    last_wide_store = {}
    last_valu_exec = -100
    nnop = 0
    for I in ins:
        if I.kind == 'label' or I.opaque:
            out.append(I)
            continue
        need = 0

        def req(prev, states):
            nonlocal need
            d = pos - prev - 1
            if d < states:
                need = max(need, states - d)
        vr = [r for r in I.r if is_vreg(r)]
        vw = [r for r in I.w if is_vreg(r)]
        sr = [r for r in I.r if not is_vreg(r)]
        isvalu = I.kind in ('valu', 'trans')
        mn = I.text.split()[0]
        if I.kind == 'mfma':
            for r in vr:
                if r in last_valu_w:
                    req(last_valu_w[r], 2)
                if r in last_mfma_w:
                    p, passes, dset = last_mfma_w[r]
                    if r in I.srcc:
                        if dset == I.srcc and passes == I.passes:
                            pass
                        else:
                            req(p, {4: 6, 8: 10}[passes])
                    else:
                        req(p, {4: 8, 8: 12}[passes])
            for r in vw:
                if r in last_mfma_w and r not in I.srcc:
                    p, passes, dset = last_mfma_w[r]
                    req(p, {4: 8, 8: 12}[passes])
        else:
            if isvalu or I.kind in ('vload', 'vstore', 'dma', 'ds_read', 'ds_write'):
                for r in set(vr) | set(vw):
                    if r in last_mfma_w:
                        p, passes, dset = last_mfma_w[r]
                        req(p, {4: 8, 8: 12}[passes])
            if isvalu:
                for r in vw:
                    if r in last_mfma_c:
                        p, passes = last_mfma_c[r]
                        req(p, {4: 3, 8: 7}[passes])
                    if r in last_wide_store:
                        req(last_wide_store[r], 2)
                if I.kind == 'valu':
                    for r in vr:
                        if r in last_trans_w:
                            req(last_trans_w[r], 1)
                else:
                    pass
                for r in sr:
                    if r in last_valu_sw:
                        req(last_valu_sw[r], 2)
                if mn.startswith('v_readfirstlane') or mn.startswith('v_readlane'):
                    for r in vr:
                        if r in last_valu_w:
                            req(last_valu_w[r], 1)
                if mn.startswith('v_permlane') or 'dpp' in I.text or 'row_' in I.text:
                    for r in vr:
                        if r in last_valu_w:
                            req(last_valu_w[r], 2)
            if I.kind in ('vload', 'ds_read'):
                for r in vw:
                    if r in last_wide_store:
                        req(last_wide_store[r], 1)
            if I.kind in ('vload', 'vstore', 'dma'):
                for r in sr:
                    if r in last_valu_sw:
                        req(last_valu_sw[r], 5)
                if I.kind == 'dma':
                    req(last_salu_m0, 1)
            if I.kind in ('salu', 'branch'):
                for r in sr:
                    if r in last_valu_sw:
                        req(last_valu_sw[r], 2)
        while need > 0:
            k = min(need, 16)
            out.append(Inst(f's_nop {k - 1}'))
            pos += k
            need -= k
            nnop += 1
        out.append(I)
        if I.kind == 'nop':
            pos += int(I.text.split()[1], 0) + 1
            continue
        if I.kind == 'mfma':
            ds = set(vw)
            for r in vw:
                last_mfma_w[r] = (pos, I.passes, ds)
                last_valu_w.pop(r, None)
                last_trans_w.pop(r, None)
            for r in I.srcc:
                last_mfma_c[r] = (pos, I.passes)
        else:
            if isvalu:
                for r in vw:
                    last_valu_w[r] = pos
                    last_mfma_w.pop(r, None)
                    if I.kind == 'trans':
                        last_trans_w[r] = pos
                    else:
                        last_trans_w.pop(r, None)
                for r in I.w:
                    if not is_vreg(r):
                        last_valu_sw[r] = pos
            elif I.kind in ('vload', 'ds_read'):
                for r in vw:
                    last_valu_w.pop(r, None)
                    last_trans_w.pop(r, None)
                    last_mfma_w.pop(r, None)
            if I.kind == 'salu':
                if ('x', 'm0') in I.w:
                    last_salu_m0 = pos
                for r in I.w:
                    last_valu_sw.pop(r, None)
            if I.wide_store:
                for r in vr:
                    last_wide_store[r] = pos
        pos += 1
    return out, nnop


def interleave(mains, fills, budget, first=0, last=None):
    groups = [f if isinstance(f, list) else [f] for f in fills]
    cost = [sum(i.cost for i in g) for g in groups]
    total = sum(cost)
    n = len(mains)
    if last is None:
        last = n - 1
    room = []
    for k, m in enumerate(mains):
        used = sum(i.cost for i in m if i.kind != 'mfma' and not i.opaque)
        room.append(max(budget - used, 0) if first <= k <= last else 0)
    tot_room = sum(room)
    scale = min(1.0, total / tot_room) if tot_room else 0.0
    over = max(0.0, (total - tot_room) / max(1, last - first + 1))
    out = []
    gi = 0
    credit = 0.0
    for k, m in enumerate(mains):
        out += m
        if k < first or k > last:
            continue
        credit += room[k] * scale + over
        while gi < len(groups) and cost[gi] <= credit + 2:
            out += groups[gi]
            credit -= cost[gi]
            gi += 1
        if k == last:
            while gi < len(groups):
                out += groups[gi]
                gi += 1
    assert gi == len(groups)
    return out


def finalize(ins):
    a, st = insert_waits(ins)
    b, nn = insert_nops(a)
    return b, st, nn


def render(ins):
    lines = []
    for I in ins:
        if I.kind == 'label':
            lines.append(I.text)
        else:
            lines.append('  ' + I.text + (('   ; ' + I.comment) if I.comment else ''))
    return '\n'.join(lines) + '\n'
```

```python
import sys
from asmlib import Prog, Token, mk, interleave, finalize, render

KNAME = 'gated_mix__linear_attn_block__swiglu_ffn__prompt_kernel'

NT = 42
HB = 0x0
HB_W = NT * 2048
WP = 0x1500000
WP_T = 36 * 1024
YP = 0x1B00000
YP_SLOT = 9 * 1024
KVP = 0x2E00000
FL = 0x2F00000
TS = 0x3000000
WS_SIZE = 0x10000000

K = 1024
SLOT_A = [0, 12 * K, 24 * K, 36 * K, 48 * K]
SLOT_X = [64 * K, 76 * K]
L_G = 60 * K
L_KVS = 61 * K
L_XS = 64 * K
L_PB = 88 * K
L_PQ = 124 * K
L_KVW = 140 * K
P2_SLOTS = {0: [88 * K + 9 * K * i for i in range(4)],
            1: [9 * K * i for i in range(4)],
            2: [124 * K + 9 * K * i for i in range(4)],
            3: [36 * K, 45 * K, 61 * K, 70 * K]}
L_OWN = 88 * K
LDS_BYTES = 160 * K
HRING = 16

sArr = 's0'
sBsId = 's1'
sTS = 's2'
sWave = 's3'
SRD_X, SRD_WG, SRD_WU, SRD_QKV, SRD_WS = 's[4:7]', 's[8:11]', 's[12:15]', 's[16:19]', 's[20:23]'
SRD_PC, SRD_PKS, SRD_PKD, SRD_OUT, SRD_DBG = 's[24:27]', 's[28:31]', 's[32:35]', 's[36:39]', 's[40:43]'
SRD_GW = SRD_OUT
sPf = 's44'
sT3 = 's45'
sPfq = 's94'
sKq, sMt, sJj, sNg, sMt128, sNq = 's48', 's49', 's50', 's51', 's52', 's53'
sXoff, sXlds, sWrow, sLw3, sQoff, sLw1, sPCoff, sHB0 = 's54', 's55', 's56', 's57', 's58', 's59', 's60', 's61'
sT, sT2 = 's62', 's63'
sPKsrc, sPKdst, sPKlds, sKK0, sTwo, sLim = 's64', 's65', 's66', 's67', 's68', 's69'
sFlKV, sFlH, sFlPK, sFlY, sKVst, sKVld = 's70', 's71', 's72', 's73', 's74', 's75'
sHP, sOst, sH2, sW2, sYst, sYld = 's76', 's77', 's78', 's79', 's80', 's81'
sCnt, sPKfl, sOut = 's82', 's84', 's85'
kqp, tp = 's100', 's101'
M_Q1, M_Q2, M_Z, M_7, M_GATE = 's[86:87]', 's[88:89]', 's[90:91]', 's[96:97]', 's[98:99]'
M_LO = 's[92:93]'
sZ = ['s4', 's5', 's6', 's7']
sO = ['s54', 's55', 's64']

SET_A, SET_B, SET_S = 0, 64, 128
XOV = 160
WF = 192
TMP = 208
vLane16, vGU, vTr0, vTr1, vHS, vQD, vTq0, vTq1, vPD, vTp, vHP, vGA = [f'v{i}' for i in range(224, 236)]
GATE0 = 236
vGL, vGR, vKW, vKR, vFa, vFb, vFc, vFd, vFe = [f'v{i}' for i in range(236, 245)]
vPKs, vPKr, vPQw, vPQr, vLane, vDum, vOne, vPoll, vHi0, vHi1, vSt = [f'v{i}' for i in range(245, 256)]
ACC_B, ACC_A, WF2 = 0, 72, 144

LOG2E = '0x3fb8aa3b'
NLOG2E = '0xbfb8aa3b'
EPS = '0x358637bd'


def vr(base, n):
    return f'v[{base}:{base + n - 1}]'


def xreg(rt, ks):
    if ks < 32:
        b = (ks * 2 + rt) * 4
        return f'a[{b}:{b + 3}]'
    b = XOV + ((ks - 32) * 2 + rt) * 4
    return f'v[{b}:{b + 3}]'


class Gen:
    def __init__(self, opt):
        self.o = opt
        self.P = Prog()
        self.nlabel = 0
        self.nstamp = 0
        self.xtok, self.xrtok, self.stok, self.gtok, self.ftok = {}, {}, {}, {}, {}
        self.ncs, self.cs_names, self.cur = 0, [], ''

    def label(self, stem):
        self.nlabel += 1
        return f'L_{stem}_{self.nlabel}'

    def e(self, text, **kw):
        return self.P.emit(text, **kw)

    def stamp(self):
        if not self.o.get('stamps'):
            return
        if self.nstamp == 0:
            self.e(f'''s_mov_b64 exec, 1
                       buffer_store_dword {vSt}, off, {SRD_WS}, {sTS}
                       s_mov_b64 exec, -1''')
            self.nstamp = 1
        i = self.nstamp
        self.nstamp += 1
        self.P.raw('s_memrealtime s[46:47]\ns_waitcnt lgkmcnt(0)')
        self.e('s_waitcnt lgkmcnt(0)')
        self.e(f'''v_mov_b32 {vSt}, s46
                   s_mov_b64 exec, 1
                   buffer_store_dword {vSt}, off, {SRD_WS}, {sTS} offset:{4 * i}
                   s_mov_b64 exec, -1''')

    def cstamp(self):
        if not self.o.get('bstamp'):
            return []
        i = self.ncs
        self.ncs += 1
        g = []
        if i > 1:
            g += mk(f'v_writelane_b32 {vSt}, s46, {i - 1}')
        P = Prog()
        P.raw('s_memtime s[46:47]')
        if i == 0:
            P.raw(f's_waitcnt lgkmcnt(0)\nv_writelane_b32 {vSt}, s46, 0')
        self.cs_names.append(self.cur)
        return g + P.ins

    def barrier(self, vm=(), lg=()):
        return mk('s_barrier', vm=list(vm), lgkm=list(lg)) + self.cstamp()

    def prologue(self):
        e = self.e
        e('s_cmp_ge_u32 s2, 256')
        e('s_cbranch_scc1 L_end')
        e('s_load_dwordx16 s[64:79], s[0:1], 0')
        e('s_load_dwordx4 s[80:83], s[0:1], 64')
        e('s_load_dwordx2 s[84:85], s[0:1], 80')
        T = [f'v{TMP + i}' for i in range(16)]
        e(f'''v_lshrrev_b32 {T[0]}, 6, v0
              v_and_b32 {vLane}, 63, v0
              v_readfirstlane_b32 {sWave}, {T[0]}
              v_lshlrev_b32 {vLane16}, 4, {vLane}
              v_mov_b32 {vOne}, 1''')
        e(f'''s_and_b32 {sKq}, s2, 3
              s_lshr_b32 {sT}, s2, 2
              s_and_b32 {sT}, {sT}, 1
              s_lshl_b32 {sT}, {sT}, 2
              s_lshr_b32 {sMt}, s2, 6
              s_add_u32 {sMt}, {sMt}, {sT}
              s_lshr_b32 {sJj}, s2, 3
              s_and_b32 {sJj}, {sJj}, 7
              s_lshl_b32 {sNg}, {sKq}, 3
              s_add_u32 {sNg}, {sNg}, {sJj}''')
        self.vXe, self.vXo = f'v{SET_B}', f'v{SET_B + 1}'
        self.vXr = [f'v{SET_B + 2 + i}' for i in range(4)]
        self.vPf = f'v{SET_B + 6}'
        r8, u8 = T[1], T[2]
        e(f'''v_lshrrev_b32 {r8}, 3, {vLane}
              v_and_b32 {u8}, 7, {vLane}
              v_lshrrev_b32 {T[3]}, 1, {r8}
              v_xor_b32 {T[4]}, {u8}, {T[3]}
              v_xor_b32 {T[5]}, 4, {T[4]}
              v_mul_u32_u24 {T[6]}, 1152, {r8}
              v_lshl_add_u32 {self.vXe}, {T[4]}, 4, {T[6]}
              v_lshl_add_u32 {self.vXo}, {T[5]}, 4, {T[6]}
              v_and_b32 {T[3]}, 1, {T[3]}
              v_lshlrev_b32 {T[3]}, 2, {T[3]}
              v_xor_b32 {T[3]}, {T[3]}, {u8}
              v_mul_u32_u24 {T[6]}, 9216, {r8}
              v_lshl_add_u32 {vGU}, {T[3]}, 4, {T[6]}''')
        e(f'''s_mul_i32 {sXoff}, {sMt}, {256 * 1152}
              s_mul_i32 {sT}, {sWave}, {64 * 1152}
              s_add_u32 {sXoff}, {sXoff}, {sT}
              s_mul_i32 {sXlds}, {sWave}, {24 * K}
              s_add_u32 {sXlds}, {sXlds}, {L_XS}
              s_mul_i32 {sWrow}, {sWave}, {24 * 9216}
              s_lshl_b32 {sT}, {sNg}, 8
              s_add_u32 {sWrow}, {sWrow}, {sT}
              s_mul_i32 {sLw3}, {sWave}, 3072
              s_lshl_b32 {sLw1}, {sWave}, 10''')
        if self.o.get('stamps'):
            self.P.raw('s_memrealtime s[46:47]')
        e('s_waitcnt lgkmcnt(0)')
        if self.o.get('stamps'):
            e(f'v_mov_b32 {vSt}, s46')

        def srd_text(s, lo, size):
            b = int(s[2:].split(':')[0])
            return f'''s_mov_b32 s{b}, s{lo}
                       s_mov_b32 s{b + 1}, s{lo + 1}
                       s_mov_b32 s{b + 2}, {size}
                       s_mov_b32 s{b + 3}, 0x20000'''
        e(srd_text(SRD_X, 64, 2048 * 1152))
        e(srd_text(SRD_WG, 72, 576 * 9216))
        if self.o.get('bstamp'):
            e(f's_mov_b32 {sBsId}, s2')
            self.cur = 'start'
            self.P.add(self.cstamp())
        self.issue_x(0)
        self.issue_stage(0)
        self.issue_x(1)
        self.issue_stage(1)
        self.issue_x(2)
        e(srd_text(SRD_WU, 74, 576 * 9216))
        e(srd_text(SRD_QKV, 66, 576 * 3456))
        self.issue_stage(2)
        self.issue_stage(3)
        self.issue_stage(4)
        if self.o.get('pfx', 1):
            e(f'''v_and_b32 {T[3]}, 31, {vLane}
                  v_mul_u32_u24 {T[3]}, 1152, {T[3]}
                  v_lshrrev_b32 {T[4]}, 5, {vLane}
                  v_lshl_add_u32 {T[3]}, {T[4]}, 7, {T[3]}
                  s_lshl_b32 {sT}, {sMt}, 3
                  s_add_u32 {sT}, {sT}, {sJj}
                  s_mul_i32 {sT}, {sT}, {32 * 1152}
                  s_lshl_b32 {sT2}, {sWave}, 8
                  s_add_u32 {sT}, {sT}, {sT2}
                  s_add_u32 {sT}, {sT}, 384''')
            g = mk(f'buffer_load_dword {vDum}, {T[3]}, {SRD_X}, {sT} offen')
            g[0].notrack = True
            self.P.add(g)
        e(f'''s_mul_i32 {sPf}, {sMt}, 72
              s_mul_i32 {sT}, {sWave}, 18
              s_add_u32 {sPf}, {sPf}, {sT}
              s_mul_i32 {sPf}, {sPf}, 9216''')
        if self.o.get('pfu', 1):
            self.P.add(self.slab_pf(SRD_WU, f's_lshl_b32 {sT2}, {sNg}, 8', T[3]))
        e(f's_mul_i32 {sPfq}, s2, {61 * 128}')
        if self.o.get('pfq', 0) == 0:
            self.P.add(self.qkv_pf(T[3]))
        m, hh, sw = T[0], T[1], T[2]
        e(f'''v_and_b32 {m}, 31, {vLane}
              v_lshrrev_b32 {hh}, 5, {vLane}
              v_lshrrev_b32 {sw}, 1, {m}
              v_and_b32 {sw}, 7, {sw}
              v_xor_b32 {sw}, {sw}, {hh}
              v_lshlrev_b32 {T[3]}, 7, {m}
              v_add_u32 {T[3]}, {sXlds}, {T[3]}''')
        for ks4 in range(4):
            e(f'''v_xor_b32 {T[4]}, {2 * ks4}, {sw}
                  v_lshl_add_u32 {self.vXr[ks4]}, {T[4]}, 4, {T[3]}''')
        gs, rp, c = T[6], T[7], T[8]
        row = T[9]
        e(f'''v_bfe_u32 {gs}, {vLane}, 4, 1
              v_bfe_u32 {rp}, {vLane}, 2, 2
              v_and_b32 {c}, 3, {vLane}
              v_lshl_add_u32 {row}, {hh}, 3, {rp}
              v_and_b32 {T[10]}, 1, {c}
              v_lshl_add_u32 {T[10]}, {T[10]}, 1, {gs}
              v_lshrrev_b32 {T[11]}, 1, {c}
              v_lshlrev_b32 {T[11]}, 3, {T[11]}
              v_lshl_add_u32 {T[11]}, {T[10]}, 4, {T[11]}
              v_lshl_add_u32 {T[11]}, {row}, 7, {T[11]}
              v_lshrrev_b32 {T[12]}, 1, {rp}
              v_lshl_add_u32 {vTr0}, {T[12]}, 6, {T[11]}
              v_xor_b32 {T[12]}, 1, {T[12]}
              v_lshl_add_u32 {vTr1}, {T[12]}, 6, {T[11]}''')

        D = self.deferred = []

        def d(text, **kw):
            D.append(mk(text, **kw))
        d(srd_text(SRD_WS, 84, WS_SIZE))
        d(srd_text(SRD_DBG, 82, 256))
        d(srd_text(SRD_GW, 78, 1152))
        d(f'''v_and_b32 {T[11]}, 15, {vLane}
              s_lshl_b32 {sT}, {sWave}, 4
              v_add_u32 {T[11]}, {sT}, {T[11]}
              v_lshlrev_b32 {T[12]}, 6, {T[11]}
              v_add_u32 {vGA}, 48, {T[12]}
              v_lshlrev_b32 {T[11]}, 1, {T[11]}''')
        for st in range(0, 9, 3):
            d('\n'.join(f'buffer_load_ushort v{GATE0 + i}, {T[11]}, {SRD_GW}, 0 offen offset:{128 * i}' for i in range(st, st + 3)))
        d(srd_text(SRD_OUT, 80, 2048 * 1152))
        d(f'''s_cmp_lt_u32 {sWave}, 2
              s_cselect_b32 s24, s72, s74
              s_cselect_b32 s25, s73, s75
              s_mov_b32 s26, {576 * 9216}
              s_mov_b32 s27, 0x20000''')
        d(f'''s_mul_i32 {kqp}, s2, 1561
              s_lshr_b32 {kqp}, {kqp}, 16
              s_mul_i32 {sT}, {kqp}, 42
              s_sub_u32 {tp}, s2, {sT}
              s_cmp_ge_u32 {tp}, 36
              s_cselect_b32 s28, s68, s76
              s_cselect_b32 s29, s69, s77
              s_mov_b32 s30, {4608 * 1152}
              s_cselect_b32 s30, {576 * 1152}, s30
              s_mov_b32 s31, 0x20000''')
        d(f'''s_mov_b32 s32, s84
              s_mov_b32 s33, s85
              s_mov_b32 s34, {WS_SIZE}
              s_mov_b32 s35, 0x20000
              s_cmp_ge_u32 s2, 168
              s_cselect_b32 s30, 0, s30
              s_cselect_b32 s34, 0, s34''')
        d(f'''s_and_b32 {sT}, {tp}, 15
              s_lshr_b32 {sT}, {sT}, 1
              s_lshl_b32 {sT2}, {kqp}, 3
              s_add_u32 {sT}, {sT}, {sT2}
              s_lshl_b32 {sT}, {sT}, 1
              s_lshr_b32 {sT2}, {tp}, 4
              s_add_u32 {sT}, {sT}, {sT2}
              s_lshl_b32 {sT}, {sT}, 6
              s_and_b32 {sT2}, {tp}, 1
              s_lshl_b32 {sT2}, {sT2}, 5
              s_add_u32 {sPKsrc}, {sT}, {sT2}''')
        d(f'''s_lshl_b32 {sT}, {kqp}, 7
              s_add_u32 {sT}, {sT}, {4096 - 32 * 32}
              s_lshl_b32 {sT2}, {tp}, 5
              s_add_u32 {sT}, {sT}, {sT2}
              s_cmp_ge_u32 {tp}, 32
              s_cselect_b32 {sPKsrc}, {sT}, {sPKsrc}
              s_mul_i32 {sT}, {kqp}, 144
              s_cmp_ge_u32 {tp}, 36
              s_cselect_b32 {sPKsrc}, {sT}, {sPKsrc}
              s_cselect_b32 {sTwo}, 6, 0
              s_cselect_b32 {sLim}, 18, 64''')
        d(f'''s_sub_u32 {sT}, {tp}, 36
              s_lshl_b32 {sT}, {sT}, 5
              s_cmp_ge_u32 {tp}, 36
              s_cselect_b32 {sKK0}, {sT}, 0
              s_mul_i32 {sPKsrc}, {sPKsrc}, 1152
              s_mul_i32 {sT}, {kqp}, {NT}
              s_add_u32 {sT}, {sT}, {tp}
              s_mul_i32 {sPKdst}, {sT}, {WP_T}
              s_add_u32 {sPKdst}, {sPKdst}, {WP}
              s_add_u32 {sPKdst}, {sPKdst}, {sLw1}
              s_mul_i32 {sPKlds}, {sWave}, 9216
              s_add_u32 {sPKlds}, {sPKlds}, {L_PB}''')
        d(f'''s_lshl_b32 {sT}, {kqp}, 1
              s_lshr_b32 {sT2}, {tp}, 5
              s_add_u32 {sT}, {sT}, {sT2}
              s_lshl_b32 {sT}, {sT}, 9
              s_and_b32 {sT2}, {tp}, 31
              s_lshl_b32 {sT2}, {sT2}, 2
              s_add_u32 {sT}, {sT}, {sT2}
              s_add_u32 {sPKfl}, {sT}, {FL + 384}''')
        d(f'''s_lshl_b32 {sT}, s2, 9
              s_add_u32 {sT}, {sT}, {FL}
              v_mov_b32 {T[12]}, 0
              v_mov_b32 {T[13]}, 0
              v_mov_b32 {T[14]}, 0
              v_mov_b32 {T[15]}, 0
              s_mov_b32 exec_hi, 0
              buffer_store_dwordx4 {vr(TMP + 12, 4)}, {vLane16}, {SRD_WS}, {sT} offen sc1
              s_mov_b64 exec, -1''')
        self.ztok = Token('vm')
        D[-1][-2].tok = self.ztok
        d(f'''s_and_b32 {sArr}, s2, 63
              s_lshl_b32 {sArr}, {sArr}, 2
              s_and_b32 {sT}, {sJj}, 1
              s_lshl_b32 {sMt128}, {sMt}, 1
              s_add_u32 {sMt128}, {sMt128}, {sT}
              s_lshr_b32 {sNq}, {sJj}, 1''')
        if self.o.get('stamps'):
            d(f'''s_lshl_b32 s2, s2, 8
                  s_add_u32 s2, s2, {TS}''')
        d(f'''s_mul_i32 {sQoff}, {sWave}, {16 * 3456}
              s_mul_i32 {sT}, {sNg}, 36
              s_add_u32 {sQoff}, {sQoff}, {sT}
              s_and_b32 {sT}, {sWave}, 1
              s_mul_i32 {sPCoff}, {sT}, {96 * 9216}
              s_lshl_b32 {sT}, {sNg}, 5
              s_add_u32 {sPCoff}, {sPCoff}, {sT}
              s_add_u32 {sPCoff}, {sPCoff}, 8192''')
        d(f'''s_lshr_b32 {sT}, {sWave}, 1
              s_lshl_b32 {sT2}, {sMt}, 1
              s_add_u32 {sT}, {sT}, {sT2}
              s_lshl_b32 {sT}, {sT}, 2
              s_add_u32 {sT}, {sT}, {sKq}
              s_lshl_b32 {sT}, {sT}, 2
              s_and_b32 {sT2}, {sWave}, 1
              s_lshl_b32 {sT2}, {sT2}, 1
              s_add_u32 {sT}, {sT}, {sT2}
              s_mul_i32 {sOst}, {sT}, {HB_W}''' + (f'\ns_add_u32 {sOst}, {sOst}, {HB}' if HB else ''))
        d(f'''s_lshl_b32 {sT}, {sJj}, 12
              s_add_u32 {sHB0}, {sOst}, {sT}
              s_lshr_b32 {sT}, {sJj}, 1
              s_add_u32 {sT}, {sT}, 32
              s_lshl_b32 {sT}, {sT}, 11
              s_add_u32 {sHP}, {sOst}, {sT}
              s_and_b32 {sT}, {sJj}, 1
              s_lshl_b32 {sT}, {sT}, 9
              s_add_u32 {sHP}, {sHP}, {sT}''')
        d(f'''s_lshl_b32 {sT}, {sNg}, 9
              s_add_u32 {sFlKV}, {sT}, {FL + 128}
              s_lshl_b32 {sT}, {sMt}, 2
              s_add_u32 {sT}, {sT}, {sKq}
              s_lshl_b32 {sT}, {sT}, 9
              s_add_u32 {sFlH}, {sT}, {FL + 256}
              s_lshl_b32 {sT}, {sKq}, 10
              s_add_u32 {sFlPK}, {sT}, {FL + 384}''')
        d(f'''s_lshl_b32 {sT}, {sMt128}, 2
              s_add_u32 {sT}, {sT}, {sNq}
              s_lshl_b32 {sT}, {sT}, 2
              s_lshl_b32 {sFlY}, {sT}, 9
              s_add_u32 {sFlY}, {sFlY}, {FL}''')
        d(f'''s_min_u32 {sT2}, {sWave}, 2
              s_lshl_b32 {sT2}, {sT2}, 10
              s_mul_i32 {sT}, {sNg}, {8 * 3072}
              s_add_u32 {sT}, {sT}, {KVP}
              s_add_u32 {sKVld}, {sT}, {sT2}
              s_mul_i32 {sT}, {sMt}, 3072
              s_add_u32 {sKVst}, {sKVld}, {sT}''')
        d(f'''s_lshl_b32 {sT}, {sMt128}, 2
              s_add_u32 {sT}, {sT}, {sKq}
              s_lshl_b32 {sT}, {sT}, 2
              s_add_u32 {sT}, {sT}, {sWave}
              s_mul_i32 {sH2}, {sT}, {HB_W}
              s_mul_i32 {sW2}, {sKq}, {NT * WP_T}
              s_mul_i32 {sT}, {sNq}, 9216
              s_add_u32 {sW2}, {sW2}, {sT}
              s_add_u32 {sW2}, {sW2}, {WP}''')
        d(f'''s_lshl_b32 {sT}, {sMt128}, 2
              s_add_u32 {sT}, {sT}, {sNq}
              s_lshl_b32 {sT}, {sT}, 2
              s_add_u32 {sT2}, {sT}, {sWave}
              s_lshl_b32 {sT2}, {sT2}, 2
              s_add_u32 {sT2}, {sT2}, {sKq}
              s_mul_i32 {sYst}, {sT2}, {YP_SLOT}
              s_add_u32 {sYst}, {sYst}, {YP}
              s_add_u32 {sT2}, {sT}, {sKq}
              s_lshl_b32 {sT2}, {sT2}, 2
              s_mul_i32 {sYld}, {sT2}, {YP_SLOT}
              s_add_u32 {sYld}, {sYld}, {YP}''')
        d(f'''s_lshl_b32 {sT}, {sMt128}, 2
              s_add_u32 {sT}, {sT}, {sKq}
              s_mul_i32 {sOut}, {sT}, {32 * 1152}
              s_mul_i32 {sT}, {sNq}, 288
              s_add_u32 {sOut}, {sOut}, {sT}''')
        txt = ''
        for mm, pat in ((M_Q1, 0xFFF00000), (M_Q2, 0x03F00000), (M_Z, 0x00140000), (M_7, 0x77777777), (M_GATE, 0x10000000)):
            b = int(mm[2:].split(':')[0])
            txt += f's_mov_b32 s{b}, {hex(pat)}\ns_mov_b32 s{b + 1}, {hex(pat)}\n'
        d(txt + 's_mov_b32 s92, -1\ns_mov_b32 s93, 0')
        d(f'''v_lshrrev_b32 {T[4]}, 4, {m}
              v_lshlrev_b32 {T[4]}, 10, {T[4]}
              v_and_b32 {T[5]}, 15, {m}
              v_lshl_add_u32 {T[4]}, {T[5]}, 4, {T[4]}
              v_lshl_add_u32 {vHS}, {hh}, 9, {T[4]}
              v_lshl_add_u32 {vHP}, {hh}, 8, {T[4]}
              v_add_u32 {vHi0}, 0x10000, {vTr0}
              v_add_u32 {vHi1}, 0x10000, {vTr1}''')
        d(f'''v_mul_u32_u24 {T[10]}, 6144, {gs}
              v_lshl_add_u32 {T[10]}, {row}, 5, {T[10]}
              v_and_b32 {T[11]}, 1, {c}
              v_lshl_add_u32 {T[10]}, {T[11]}, 4, {T[10]}
              v_lshrrev_b32 {T[11]}, 1, {c}
              v_lshl_add_u32 {vTp}, {T[11]}, 3, {T[10]}''')
        g8 = T[10]
        d(f'''v_lshl_add_u32 {g8}, {gs}, 2, {c}
              v_lshlrev_b32 {T[11]}, 6, {row}
              v_lshlrev_b32 {T[12]}, 3, {g8}
              v_add_u32 {T[13]}, 4096, {T[12]}
              v_add_u32 {T[14]}, -40, {T[12]}
              v_cmp_gt_u32 vcc, 5, {g8}
              v_cndmask_b32 {T[13]}, {T[14]}, {T[13]}, vcc
              v_add_u32 {vTq0}, {T[13]}, {T[11]}''')
        d(f'''v_add_u32 {T[13]}, 8192, {T[12]}
              v_add_u32 {T[14]}, -16, {T[12]}
              v_cmp_gt_u32 vcc, 5, {g8}
              v_cndmask_b32 {T[14]}, {T[14]}, {T[13]}, vcc
              v_mov_b32 {T[13]}, 48
              v_cmp_eq_u32 vcc, 7, {g8}
              v_cndmask_b32 {T[14]}, {T[14]}, {T[13]}, vcc
              v_add_u32 {vTq1}, {T[14]}, {T[11]}''')
        d(f'''v_lshrrev_b32 {T[11]}, 2, {vLane}
              v_mul_u32_u24 {T[11]}, 3456, {T[11]}
              v_lshl_add_u32 {vQD}, {c}, 4, {T[11]}
              v_lshrrev_b32 {T[11]}, 1, {vLane}
              v_mul_u32_u24 {T[11]}, 9216, {T[11]}
              v_and_b32 {T[12]}, 1, {vLane}
              v_lshl_add_u32 {vPD}, {T[12]}, 4, {T[11]}''')
        r8 = T[12]
        d(f'''v_lshrrev_b32 {r8}, 3, {vLane}
              s_lshl_b32 {sT}, {sWave}, 3
              v_add_u32 {r8}, {sT}, {r8}
              v_add_u32 {T[13]}, {sKK0}, {r8}
              v_mul_u32_u24 {T[14]}, 2731, {T[13]}
              v_lshrrev_b32 {T[14]}, 16, {T[14]}
              v_mul_u32_u24 {T[15]}, 24, {T[14]}
              v_sub_u32 {T[15]}, {T[13]}, {T[15]}''')
        d(f'''v_mul_lo_u32 {T[14]}, {T[14]}, {sTwo}
              v_sub_u32 {T[13]}, {T[13]}, {T[14]}
              v_mul_u32_u24 {T[13]}, 1152, {T[13]}
              v_and_b32 {T[14]}, 7, {vLane}
              v_lshl_add_u32 {T[13]}, {T[14]}, 4, {T[13]}
              v_mov_b32 {T[14]}, 0x7fff0000
              v_cmp_gt_u32 vcc, {sLim}, {T[15]}
              v_cndmask_b32 {vPKs}, {T[14]}, {T[13]}, vcc''')
        d(f'''v_lshrrev_b32 {T[13]}, 4, {vLane}
              v_mul_u32_u24 {T[13]}, 9216, {T[13]}
              v_lshl_add_u32 {T[13]}, {rp}, 7, {T[13]}
              v_lshl_add_u32 {T[13]}, {c}, 3, {T[13]}
              s_lshl_b32 {sT}, {sWave}, 5
              s_add_u32 {sT}, {sT}, {L_PB}
              v_add_u32 {vPKr}, {sT}, {T[13]}''')
        d(f'''s_lshl_b32 {sT}, {sWave}, 12
              s_add_u32 {sT}, {sT}, {L_PQ}
              v_add_u32 {T[13]}, -20, {m}
              v_lshlrev_b32 {T[13]}, 7, {T[13]}
              v_lshl_add_u32 {T[13]}, {hh}, 3, {T[13]}
              v_add_u32 {vPQw}, {sT}, {T[13]}
              v_lshl_add_u32 {T[13]}, {hh}, 2, {rp}
              v_lshlrev_b32 {T[13]}, 7, {T[13]}
              v_lshl_add_u32 {T[13]}, {gs}, 5, {T[13]}
              v_lshl_add_u32 {T[13]}, {c}, 3, {T[13]}
              v_add_u32 {vPQr}, {sT}, {T[13]}''')

    def qkv_pf(self, t):
        g = mk(f'''v_min_u32 {t}, 15, {vLane}
                   v_lshlrev_b32 {t}, 7, {t}
                   s_lshl_b32 {sT2}, {sWave}, 11
                   s_add_u32 {sT}, {sPfq}, {sT2}
                   buffer_load_dword {vDum}, {t}, {SRD_QKV}, {sT} offen''')
        g[-1].notrack = True
        return g

    def slab_pf(self, srd, col_text, t):
        g = mk(f'''{col_text}
                   s_add_u32 {sT}, {sPf}, {sT2}
                   v_min_u32 {t}, 17, {vLane}
                   v_mul_u32_u24 {t}, 9216, {t}
                   buffer_load_dword {vDum}, {t}, {srd}, {sT} offen''')
        g[-1].notrack = True
        return g

    def x_dma(self, ck, i):
        slot = (ck % 3) * 8192
        v = self.vXe if i % 2 == 0 else self.vXo
        tok = Token('vm')
        g = mk(f'''s_add_u32 m0, {sXlds}, {slot + i * 1024}
                   s_add_u32 {sT}, {sXoff}, {i * 8 * 1152 + ck * 128}
                   buffer_load_dwordx4 {v}, {SRD_X}, {sT} offen lds''', tok=tok)
        self.xtok[ck] = tok
        return g

    def issue_x(self, ck):
        for i in range(8):
            self.P.add(self.x_dma(ck, i))

    def stage_info(self, s):
        if s < 6: return ('G', 0, s)
        if s < 12: return ('U', 0, s - 6)
        if s < 21: return ('Q', 0, s - 12)
        if s < 27: return ('G', 1, s - 21)
        if s < 33: return ('U', 1, s - 27)
        return ('P', 0, s - 33)

    def stage_groups(self, s):
        kind, blk, st = self.stage_info(s)
        slot = self.slot[s]
        gs = []
        for ii in range(3):
            tok = Token('vm')
            if kind in 'GU':
                srd = SRD_WG if kind == 'G' else SRD_WU
                g = mk(f'''s_add_u32 m0, {sLw3}, {slot + ii * 1024}
                           s_add_u32 {sT}, {sWrow}, {(96 * st + 8 * ii) * 9216 + 128 * blk}
                           buffer_load_dwordx4 {vGU}, {srd}, {sT} offen lds''', tok=tok)
            elif kind == 'Q':
                g = mk(f'''s_add_u32 m0, {sLw1}, {slot + ii * 4096}
                           s_add_u32 {sT}, {sQoff}, {64 * st * 3456 + ii * 1152}
                           s_mov_b64 exec, {M_7}
                           buffer_load_dwordx4 {vQD}, {SRD_QKV}, {sT} offen lds
                           s_mov_b64 exec, -1''')
                g[3].tok = tok
            else:
                g = mk(f'''s_add_u32 m0, {sLw3}, {slot + ii * 1024}
                           s_add_u32 {sT}, {sPCoff}, {(192 * st + 32 * ii) * 9216}
                           buffer_load_dwordx4 {vPD}, {SRD_PC}, {sT} offen lds''', tok=tok)
            gs.append(g)
        self.stok[s] = tok
        if kind == 'Q':
            gt = Token('lg')
            if slot < 64 * K:
                gs.append(mk(f'ds_write_b16 {vGA}, v{GATE0 + st} offset:{slot}', tok=gt))
            else:
                gs.append(mk(f'''v_add_u32 {vPoll}, 0x10000, {vGA}
                                 ds_write_b16 {vPoll}, v{GATE0 + st} offset:{slot - 64 * K}''', tok=gt))
            self.gtok[s] = gt
        return gs

    def issue_stage(self, s):
        for g in self.stage_groups(s):
            self.P.add(g)

    def plan_slots(self):
        self.slot = {s: SLOT_A[s] for s in range(5)}
        free, nxt, issue = [], 5, {}
        for b in range(1, 36):
            if b >= 2:
                free.append(self.slot[b - 2])
            if b == 7:
                free += SLOT_X
            issue[b] = []
            while free and nxt < 36:
                if nxt >= 33:
                    cand = [x for x in free if x >= 36 * K]
                    if not cand:
                        break
                    free.remove(cand[0])
                    self.slot[nxt] = cand[0]
                else:
                    self.slot[nxt] = free.pop(0)
                issue[b].append(nxt)
                nxt += 1
        assert nxt == 36
        self.issue = issue

    PH = [('G0', 0, 72, 0), ('U0', 72, 144, 6), ('QKV', 144, 216, 12), ('G1', 216, 288, 21), ('U1', 288, 360, 27), ('PC', 360, 396, 33)]

    def frag_info(self, phi):
        for ph, f0, f1, s0 in self.PH:
            if phi < f1:
                break
        j = phi - f0
        if ph == 'PC':
            return (s0 + j // 12, j % 12, 0, j, ph)
        ks, ct = j // 2, j % 2
        per = 4 if ph == 'QKV' else 6
        return (s0 + ks // per, ks % per, ct, ks, ph)

    def frag_load(self, phi):
        s, kin, ct, ks, ph = self.frag_info(phi)
        slot = self.slot[s]
        b = WF + (phi % 4) * 4
        hi = slot >= 64 * K
        if hi:
            slot -= 64 * K
        if ph == 'QKV':
            a, off, dp = (vTq0, vTq1)[ct], slot + kin * 1024, 256
        elif ph == 'PC':
            a, off, dp = vTp, slot + kin * 512, 128
        else:
            a, off, dp = (vTr0, vTr1)[ct], slot + kin * 2048, 512
        if hi:
            a = (vHi0, vHi1)[ct]
        tok = Token('lg')
        self.ftok[phi] = tok
        return mk(f'''ds_read_b64_tr_b16 {vr(b, 2)}, {a} offset:{off}
                      ds_read_b64_tr_b16 {vr(b + 2, 2)}, {a} offset:{off + dp}''', tok=tok)

    def first_frag(self, s):
        for ph, f0, f1, s0 in reversed(self.PH):
            if s >= s0:
                per = 8 if ph == 'QKV' else 12
                return f0 + per * (s - s0)

    def acc(self, ph, ct, rt):
        base = {'G0': SET_A, 'U0': SET_B, 'QKV': SET_A, 'G1': SET_B, 'U1': SET_A, 'PC': SET_B}[ph]
        return base + (ct * 2 + rt) * 16

    def mfma(self, phi, rt):
        s, kin, ct, ks, ph = self.frag_info(phi)
        d = self.acc(ph, ct, rt)
        w = vr(WF + (phi % 4) * 4, 4)
        x = xreg(rt, ks)
        c = '0' if ks == 0 else vr(d, 16)
        lg = None
        if self.o.get('pairwait', 0) and rt == 0 and phi % 2 == 0 and phi + 1 in self.ftok:
            lg = [self.ftok[phi + 1]]
        if ph == 'QKV':
            return mk(f'v_mfma_f32_32x32x16_bf16 {vr(d, 16)}, {x}, {w}, {c}', lgkm=lg)
        return mk(f'v_mfma_f32_32x32x16_bf16 {vr(d, 16)}, {w}, {x}, {c}', lgkm=lg)

    def x_reads(self, ck):
        out = []
        slot = (ck % 3) * 8192
        for ks4 in range(4):
            for rt in range(2):
                tok = Token('lg')
                out.append(mk(f'ds_read_b128 {xreg(rt, 4 * ck + ks4)}, {self.vXr[ks4]} offset:{slot + rt * 4096}', tok=tok,
                              vm=[self.xtok[ck]] if not out else None))
        self.xrtok[ck] = tok
        return out

    def silu_stream(self, src, order):
        out = []
        for n, b in enumerate(order):
            t = [TMP + (n % 2) * 4 + i for i in range(4)]
            g = [src + b + i for i in range(4)]
            for i in range(4): out += mk(f'v_mul_f32 v{t[i]}, {NLOG2E}, v{g[i]}')
            for i in range(4): out += mk(f'v_exp_f32 v{t[i]}, v{t[i]}')
            for i in range(4): out += mk(f'v_add_f32 v{t[i]}, 1.0, v{t[i]}')
            for i in range(4): out += mk(f'v_rcp_f32 v{t[i]}, v{t[i]}')
            for i in range(4): out += mk(f'v_mul_f32 v{t[i]}, v{g[i]}, v{t[i]}')
            for i in range(2): out += mk(f'v_cvt_pk_bf16_f32 v{SET_S + b // 2 + i}, v{t[2 * i]}, v{t[2 * i + 1]}')
        return out

    def h_stream(self, blk, usrc):
        out = []
        tok = None
        hb = TMP + 8
        for ct in range(2):
            for rt in range(2):
                ti = ct * 2 + rt
                for half in range(2):
                    for d in range(0, 4, 2):
                        dd = [half * 4 + d, half * 4 + d + 1]
                        s = [SET_S + ti * 8 + x for x in dd]
                        u = [usrc + ti * 16 + 2 * dd[0] + i for i in range(4)]
                        t = [TMP + i for i in range(4)]
                        out += mk(f'v_lshlrev_b32 v{t[0]}, 16, v{s[0]}')
                        out += mk(f'v_and_b32 v{t[1]}, 0xffff0000, v{s[0]}')
                        out += mk(f'v_lshlrev_b32 v{t[2]}, 16, v{s[1]}')
                        out += mk(f'v_and_b32 v{t[3]}, 0xffff0000, v{s[1]}')
                        for i in range(4): out += mk(f'v_mul_f32 v{t[i]}, v{t[i]}, v{u[i]}')
                        out += mk(f'v_cvt_pk_bf16_f32 v{hb + dd[0]}, v{t[0]}, v{t[1]}')
                        out += mk(f'v_cvt_pk_bf16_f32 v{hb + dd[1]}, v{t[2]}, v{t[3]}')
                    tok = Token('vm')
                    off = rt * HB_W + (16 * blk + ct) * 2048
                    out.append(mk(f'''s_add_u32 {sT2}, {sHB0}, {off}
                                      buffer_store_dwordx4 {vr(hb + half * 4, 4)}, {vHS}, {SRD_WS}, {sT2} offen offset:{half * 256} sc1''', tok=tok))
        return out, tok

    def phi_ops(self, x, u, t):
        return [f'v_min_f32 v{t}, 0, v{x}', f'v_max_f32 v{u}, 0, v{x}', f'v_mul_f32 v{t}, {LOG2E}, v{t}',
                f'v_exp_f32 v{t}, v{t}', f'v_add_f32 v{u}, {EPS}, v{u}', f'v_add_f32 v{u}, v{u}, v{t}']

    def attn_stream(self):
        out = []
        D1, D3 = SET_S, SET_S + 16
        ones = SET_A + 8
        u = [TMP + i for i in range(4)]
        t = [TMP + 4 + i for i in range(4)]
        pq = TMP + 8
        out.append(mk(f'''s_lshl_b32 {sT2}, {sWave}, 12
                          s_add_u32 {sT2}, {sT2}, {L_PQ + 2048}
                          v_add_u32 v{pq + 4}, {sT2}, {vLane16}
                          v_mov_b32 v{pq}, 0
                          v_mov_b32 v{pq + 1}, 0'''))
        out.append(mk(f'''v_mov_b32 v{pq + 2}, 0
                          v_mov_b32 v{pq + 3}, 0
                          ds_write_b128 v{pq + 4}, {vr(pq, 4)}
                          ds_write_b128 v{pq + 4}, {vr(pq, 4)} offset:1024'''))
        for rt in range(2):
            t1 = self.acc('QKV', 0, rt)
            t2 = self.acc('QKV', 1, rt)
            for b in range(0, 16, 4):
                seqs = [self.phi_ops(t1 + b + i, u[i], t[i]) for i in range(4)]
                for k in range(6):
                    for i in range(4): out += mk(seqs[i][k])
                for i in range(2): out += mk(f'v_cvt_pk_bf16_f32 v{t1 + b // 2 + i}, v{u[2 * i]}, v{u[2 * i + 1]}')
            out.append(mk(f's_mov_b64 exec, {M_Q1}\n' +
                          '\n'.join(f'ds_write_b64 {vPQw}, {vr(t1 + 2 * gq, 2)} offset:{(32 * rt + 8 * gq) * 2}' for gq in range(4)) +
                          '\ns_mov_b64 exec, -1'))
            if rt == 0:
                for i in range(4): out += mk(f'v_mov_b32 v{ones + i}, 0x3f803f80')
            out.append(mk(f's_mov_b64 exec, {M_GATE}\n' +
                          '\n'.join(f'ds_write_b128 {vGL}, {vr(t2 + 4 * gq, 4)} offset:{(32 * rt + 8 * gq) * 4}' for gq in range(4)) +
                          '\ns_mov_b64 exec, -1'))
            for b in range(0, 16, 4):
                seqs = [self.phi_ops(t2 + b + i, u[i], t[i]) for i in range(4)]
                for k in range(6):
                    for i in range(4): out += mk(seqs[i][k])
                for i in range(2): out += mk(f'v_cvt_pk_bf16_f32 v{pq + b // 2 + i}, v{u[2 * i]}, v{u[2 * i + 1]}')
                for i in range(2): out += mk(f'v_cvt_pk_bf16_f32 v{t2 + b // 2 + i}, v{t2 + b + 2 * i}, v{t2 + b + 2 * i + 1}')
            out.append(mk(f's_mov_b64 exec, {M_Q2}\n' +
                          '\n'.join(f'ds_write_b64 {vPQw}, {vr(pq + 2 * gq, 2)} offset:{1536 + (32 * rt + 8 * gq) * 2}' for gq in range(4)) +
                          '\ns_mov_b64 exec, -1'))
            for j in range(2):
                c1 = '0' if (rt == 0 and j == 0) else vr(D1, 16)
                c3 = '0' if (rt == 0 and j == 0) else vr(D3, 16)
                out += mk(f'v_mfma_f32_32x32x16_bf16 {vr(D1, 16)}, {vr(t1 + 4 * j, 4)}, {vr(t2 + 4 * j, 4)}, {c1}')
                out += mk(f'v_mfma_f32_32x32x16_bf16 {vr(D3, 16)}, {vr(t1 + 4 * j, 4)}, {vr(ones, 4)}, {c3}')
        return out

    def gate_finish(self):
        t = TMP + 13
        return [mk(f'ds_read_b32 v{t}, {vGR}'),
                mk(f'v_mul_f32 v{t}, {NLOG2E}, v{t}'),
                mk(f'v_exp_f32 v{t}, v{t}'),
                mk(f'v_add_f32 v{t}, 1.0, v{t}'),
                mk(f'v_rcp_f32 v{t}, v{t}'),
                mk(f'ds_write_b32 {vGR}, v{t}')]

    def kv_merge_write(self):
        D1, D3 = SET_S, SET_S + 16
        out = []
        for r in range(12):
            out += mk(f'v_cndmask_b32 v{D1 + r}, v{D1 + r}, v{D3 + r}, {M_Z}')
        for gi in range(3):
            tok = Token('lg')
            out.append(mk(f'ds_write_b128 {vKW}, {vr(D1 + 4 * gi, 4)} offset:{gi * 1024}', tok=tok))
        return out, tok

    def kv_sum_store(self):
        a, b = TMP + 8, TMP + 12
        gs = [mk(f'''s_min_u32 {sT}, {sWave}, 2
                     s_lshl_b32 {sT}, {sT}, 10
                     s_add_u32 {sT}, {sT}, {L_KVW}
                     v_add_u32 {vKR}, {sT}, {vLane16}'''),
              mk(f'''ds_read_b128 {vr(a, 4)}, {vKR}
                     ds_read_b128 {vr(b, 4)}, {vKR} offset:3072'''), [], []]
        for wv in (1, 2, 3):
            gs.append(mk('\n'.join(f'v_add_f32 v{a + i}, v{a + i}, v{b + i}' for i in range(4))))
            if wv < 3:
                gs += [mk(f'ds_read_b128 {vr(b, 4)}, {vKR} offset:{(wv + 1) * 3072}'), [], []]
        tok = Token('vm')
        gs.append(mk(f'buffer_store_dwordx4 {vr(a, 4)}, {vLane16}, {SRD_WS}, {sKVst} offen sc1', tok=tok))
        return gs, tok

    def set_flag(self, pre, saddr, srd=SRD_WS):
        return mk(f'''{pre}
                      s_mov_b64 exec, 1
                      buffer_store_dword {vOne}, off, {srd}, {saddr} sc1
                      s_mov_b64 exec, -1''')

    def poll_issue(self, reg, vaddr, srd, soff):
        return mk(f'buffer_load_dword {reg}, {vaddr}, {srd}, {soff} offen sc1')

    def poll_check(self, reg, vaddr, srd, soff, value, cmp='eq'):
        ok, lp = self.label('ok'), self.label('spin')
        head = mk(f'''v_cmp_{cmp}_u32 vcc, {value}, {reg}
                      s_cmp_eq_u64 vcc, exec
                      s_cbranch_scc1 {ok}''')
        P = Prog()
        P.raw(f'''s_mov_b32 {sCnt}, 0
                  {lp}:
                  buffer_load_dword {reg}, {vaddr}, {srd}, {soff} offen sc1
                  s_add_u32 {sCnt}, {sCnt}, 1
                  s_waitcnt vmcnt(0)
                  v_cmp_{cmp}_u32 vcc, {value}, {reg}
                  s_nop 4
                  s_cmp_ge_u32 {sCnt}, 0x40000
                  s_cbranch_scc1 {ok}
                  s_cmp_eq_u64 vcc, exec
                  s_cbranch_scc0 {lp}''')
        return head + P.ins + mk(f'{ok}:')

    def pack_loads(self):
        gs = []
        for i in range(9):
            tok = Token('vm')
            gs += [mk(f'''s_add_u32 m0, {sPKlds}, {i * 1024}
                          s_add_u32 {sT}, {sPKsrc}, {i * 128}
                          buffer_load_dwordx4 {vPKs}, {SRD_PKS}, {sT} offen lds''', tok=tok), []]
        return gs, tok

    def pack_stores(self):
        gs = []
        for i in range(9):
            b = TMP + 8 + (i % 2) * 4
            gs.append(mk(f'''ds_read_b64_tr_b16 {vr(b, 2)}, {vPKr} offset:{i * 1024}
                             ds_read_b64_tr_b16 {vr(b + 2, 2)}, {vPKr} offset:{i * 1024 + 512}'''))
            if i > 0:
                pb = TMP + 8 + ((i - 1) % 2) * 4
                gs.append(mk(f'''s_add_u32 {sT}, {sPKdst}, {(i - 1) * 4096}
                                 buffer_store_dwordx4 {vr(pb, 4)}, {vLane16}, {SRD_PKD}, {sT} offen sc1'''))
            gs.append([])
        tok = Token('vm')
        gs.append(mk(f'''s_add_u32 {sT}, {sPKdst}, {8 * 4096}
                         buffer_store_dwordx4 {vr(TMP + 8, 4)}, {vLane16}, {SRD_PKD}, {sT} offen sc1''', tok=tok))
        return gs, tok

    def w2_groups(self, S):
        gs = []
        if S < 10:
            z = sZ[S % 4]
            for n0, n1 in ((0, 4), (4, 8), (8, 9)):
                gs.append(mk(f's_add_u32 {sT}, {sW2}, {4 * S * WP_T + n0 * 1024}'))
                gs.append(mk(f's_add_u32 m0, {z}, {n0 * 1024}'))
                for nf in range(n0, n1):
                    tok = Token('vm')
                    gs.append(mk(f'buffer_load_dwordx4 {vLane16}, {SRD_WS}, {sT} offen offset:{(nf - n0) * 1024} sc1 lds', tok=tok))
        else:
            slot = P2_SLOTS[S % 4][0]
            gs.append(mk(f'''s_mul_i32 {sT3}, {sWave}, {WP_T}
                             s_sub_u32 {sT3}, {sW2}, {sT3}
                             s_lshr_b32 {sT}, {sWave}, 1
                             s_mul_i32 {sT}, {sT}, {WP_T}
                             s_add_u32 {sT3}, {sT3}, {sT}'''))
            gs.append(mk(f'''s_and_b32 {sT}, {sWave}, 1
                             s_lshl_b32 {sT}, {sT}, 12
                             s_add_u32 {sT3}, {sT3}, {sT}
                             s_add_u32 {sT3}, {sT3}, {40 * WP_T}'''))
            gs.append(mk(f'''s_lshr_b32 {sCnt}, {sWave}, 1
                             s_mul_i32 {sCnt}, {sCnt}, 9216
                             s_add_u32 {sCnt}, {sCnt}, {sT}
                             s_add_u32 m0, {sCnt}, {slot}'''))
            for ii in range(4):
                gs.append(mk(f'buffer_load_dwordx4 {vLane16}, {SRD_WS}, {sT3} offen offset:{ii * 1024} sc1 lds'))
            tok = Token('vm')
            gs.append(mk(f'''s_add_u32 m0, {sCnt}, {slot + 4096}
                             s_add_u32 {sT}, {sT3}, 4096
                             buffer_load_dwordx4 {vLane16}, {SRD_WS}, {sT} offen sc1 lds''', tok=tok))
        self.w2tok[S] = tok
        return gs

    def bar_events(self, s):
        vm, lg = [self.stok[s]], []
        if s in self.gtok:
            lg.append(self.gtok[s])
        if s == 10:
            vm.append(self.pkltok)
        if s == 11:
            vm.append(self.ztok)
        if s == 23:
            vm += [self.h0tok, self.pkstok]
        if s == 28:
            lg.append(self.kvwtok)
        if s == 30:
            vm.append(self.kvstok)
        return vm, lg

    def post_bar(self, s):
        g = []
        pf = self.o.get('pf2', 1)
        if s == 7:
            gl, self.pkltok = self.pack_loads()
            g += gl
        if s == 10:
            gl, self.pkstok = self.pack_stores()
            g += gl
        if s == 11:
            g.append(mk(f'''s_cmp_eq_u32 {sWave}, 0
                            s_cselect_b32 {sT}, {sArr}, 0x1000
                            s_mov_b64 exec, 1
                            buffer_atomic_add {vOne}, off, {SRD_DBG}, {sT} sc1
                            s_mov_b64 exec, -1'''))
        if s == self.o.get('pfq', 0) and s > 0:
            g.append(self.qkv_pf(vPoll))
        if s == self.o.get('pf2at', 4) and pf:
            g.append(self.slab_pf(SRD_WG, f's_lshl_b32 {sT2}, {sNg}, 8\ns_add_u32 {sT2}, {sT2}, 128', vPoll))
            g.append(self.slab_pf(SRD_WU, f's_lshl_b32 {sT2}, {sNg}, 8\ns_add_u32 {sT2}, {sT2}, 128', vPoll))
            gg = mk(f'''s_mul_i32 {sT}, {sMt}, 72
                        s_and_b32 {sT2}, {sNg}, 3
                        s_mul_i32 {sT2}, {sT2}, 18
                        s_add_u32 {sT}, {sT}, {sT2}
                        s_and_b32 {sT2}, {sWave}, 1
                        s_mul_i32 {sT2}, {sT2}, 9
                        s_add_u32 {sT}, {sT}, {sT2}
                        s_mul_i32 {sT}, {sT}, 9216
                        s_lshr_b32 {sT2}, {sNg}, 2
                        s_lshl_b32 {sT2}, {sT2}, 7
                        s_add_u32 {sT}, {sT}, {sT2}
                        s_add_u32 {sT}, {sT}, 8192
                        v_min_u32 {vPoll}, 8, {vLane}
                        v_mul_u32_u24 {vPoll}, 9216, {vPoll}
                        buffer_load_dword {vDum}, {vPoll}, {SRD_PC}, {sT} offen''')
            gg[-1].notrack = True
            g.append(gg)
        if s == 21:
            g.append(mk(f'v_lshlrev_b32 {vFe}, 2, {vLane}'))
            g.append(self.poll_issue(vPoll, vFe, SRD_DBG, '0'))
        if s == 22:
            g.append(self.poll_check(vPoll, vFe, SRD_DBG, '0', '4', 'le'))
        if s == 23:
            g.append(self.set_flag(f's_lshl_b32 {sT3}, {sJj}, 2\ns_add_u32 {sT3}, {sT3}, {sFlH}', sT3))
            g.append(self.set_flag('', sPKfl, SRD_PKD))
        if s == 28:
            gl, self.kvstok = self.kv_sum_store()
            g += gl
        if s == 26:
            g.append(mk(f'''s_mul_i32 {sT}, {sWave}, 9216
                            s_add_u32 {sZ[0]}, {sT}, {88 * K}
                            s_mov_b32 {sZ[1]}, {sT}
                            s_add_u32 {sZ[2]}, {sT}, {124 * K}'''))
            g.append(mk(f'''s_cmp_ge_u32 {sWave}, 2
                            s_cselect_b32 {sZ[3]}, {7 * K}, 0
                            s_add_u32 {sZ[3]}, {sZ[3]}, {sZ[1]}
                            s_add_u32 {sZ[3]}, {sZ[3]}, {36 * K}'''))
            g.append(mk(f'''s_mul_i32 {sT}, {sWave}, {WP_T}
                            s_add_u32 {sW2}, {sW2}, {sT}'''))
            g.append(mk(f'''v_min_u32 {vFa}, 41, {vLane}
                            v_lshrrev_b32 {vFb}, 5, {vFa}
                            v_and_b32 {vFa}, 31, {vFa}
                            v_lshlrev_b32 {vFa}, 2, {vFa}'''))
            g.append(mk(f'''v_lshl_add_u32 {vFa}, {vFb}, 9, {vFa}
                            v_and_b32 {vFb}, 7, {vLane}
                            v_lshlrev_b32 {vFb}, 2, {vFb}'''))
        if s == 27:
            g.append(self.poll_issue(vPoll, vFa, SRD_WS, sFlPK))
            g.append(self.poll_issue(vFd, vFb, SRD_WS, sFlH))
        if s == 29:
            g.append(self.poll_check(vPoll, vFa, SRD_WS, sFlPK, '1'))
            g += self.w2_groups(0)
        if s == 30:
            g.append(self.set_flag(f's_lshl_b32 {sT3}, {sMt}, 2\ns_add_u32 {sT3}, {sT3}, {sFlKV}', sT3))
        if s == 31:
            g.append(self.poll_check(vFd, vFb, SRD_WS, sFlH, '1'))
        if s == 32:
            g.append(self.poll_issue(vFc, vFb, SRD_WS, sFlKV))
        if s == 33:
            g += self.w2_groups(1)
            g.append(self.poll_check(vFc, vFb, SRD_WS, sFlKV, '1'))
            for p in range(8):
                g.append(mk(f'''s_add_u32 {sT}, {sKVld}, {p * 3072}
                                buffer_load_dwordx4 {vr(SET_B + 32 + 4 * p, 4)}, {vLane16}, {SRD_WS}, {sT} offen sc1'''))
        if s == 35:
            g += self.o_setup()
            b = SET_B + 32
            for p in range(1, 8):
                g.append(mk('\n'.join(f'v_add_f32 v{b + i}, v{b + i}, v{b + 4 * p + i}' for i in range(4))))
            self.kvsumtok = Token('lg')
            g.append(mk(f'''s_min_u32 {sT}, {sWave}, 2
                            s_lshl_b32 {sT}, {sT}, 10
                            s_add_u32 {sT}, {sT}, {L_KVS}
                            v_add_u32 {vKR}, {sT}, {vLane16}
                            ds_write_b128 {vKR}, {vr(b, 4)}''', tok=self.kvsumtok))
        return g

    def o_setup(self):
        t0, t1 = f'v{TMP + 6}', f'v{TMP + 7}'
        g = [mk(f'''s_mul_i32 {sT}, {sJj}, 3
                    v_lshrrev_b32 {t0}, 5, {vLane}
                    v_add_u32 {t0}, {sT}, {t0}
                    v_lshrrev_b32 {t1}, 2, {t0}
                    v_lshlrev_b32 {t1}, 11, {t1}'''),
             mk(f'''v_and_b32 {t0}, 3, {t0}
                    v_lshl_add_u32 {t0}, {t0}, 8, {t1}
                    v_and_b32 {t1}, 0xfffffdff, {vHS}
                    v_add_u32 {vFa}, {t0}, {t1}'''),
             mk(f'''s_add_u32 {sT}, {sT}, 0
                    s_mul_i32 {sT}, {sJj}, 3
                    s_add_u32 {sT}, {sT}, 2
                    s_lshr_b32 {sT3}, {sT}, 2
                    s_lshl_b32 {sT3}, {sT3}, 11
                    s_and_b32 {sT}, {sT}, 3
                    s_lshl_b32 {sT}, {sT}, 8
                    s_add_u32 {sT}, {sT}, {sT3}
                    v_add_u32 {vFe}, {sT}, {t1}''')]
        return g

    def p1(self):
        o, P = self.o, self.P
        for g in self.x_reads(0):
            P.add(g)
        vm, lg = self.bar_events(0)
        self.cur = 'b0'
        P.add(self.barrier(vm, lg))
        for phi in range(4):
            P.add(self.frag_load(phi))
        bar_at = {self.first_frag(s) - 4: s for s in range(1, 36)}
        self.w2tok = {}
        side, hi = [], []
        for ph, f0, f1, s0 in self.PH:
            fills, first, last = [], 6, None
            budget = o.get('budget', 24)
            if ph == 'G0':
                fills, first, last = self.deferred, 1, 120
            elif ph == 'U0':
                fills = self.silu_stream(SET_A, range(0, 64, 4))
            elif ph == 'QKV':
                fills, self.h0tok = self.h_stream(0, SET_B)
            elif ph == 'G1':
                setup = mk(f'''s_lshl_b32 {sT2}, {sWave}, 8
                               s_add_u32 {sT2}, {sT2}, {L_G}
                               v_lshrrev_b32 {vGL}, 5, {vLane}
                               v_lshlrev_b32 {vGL}, 4, {vGL}
                               v_add_u32 {vGL}, {sT2}, {vGL}
                               v_lshlrev_b32 {vGR}, 2, {vLane}
                               v_add_u32 {vGR}, {sT2}, {vGR}
                               s_mul_i32 {sT2}, {sWave}, 3072
                               s_add_u32 {sT2}, {sT2}, {L_KVW}
                               v_add_u32 {vKW}, {sT2}, {vLane16}''')
                kvw, self.kvwtok = self.kv_merge_write()
                fills = [setup] + self.attn_stream() + self.gate_finish() + kvw
                first = 4
            elif ph == 'U1':
                fills = self.silu_stream(SET_B, list(range(32, 64, 4)) + list(range(0, 32, 4)))
            elif ph == 'PC':
                fills, self.h1tok = self.h_stream(1, SET_A)
                first, last = o.get('pcfirst', 12), o.get('pclast', 56)
            mains = []
            for phi in range(f0, f1):
                for rt in range(2):
                    m = list(self.mfma(phi, rt))
                    if rt == 1:
                        if phi in bar_at:
                            s = bar_at[phi]
                            vm, lg = self.bar_events(s)
                            self.cur = f'b{s}'
                            m += self.barrier(vm, lg)
                            for st in self.issue[s]:
                                hi += self.stage_groups(st)
                            side += self.post_bar(s)
                        if phi + 4 in (144, 216, 360):
                            a0, a1 = {144: (vTq0, vTq1), 216: (vTr0, vTr1), 360: (vTp, vTp)}[phi + 4]
                            m += mk(f'v_add_u32 {vHi0}, 0x10000, {a0}\nv_add_u32 {vHi1}, 0x10000, {a1}')
                        if phi + 4 < 396:
                            m += self.frag_load(phi + 4)
                        if ph == 'PC' and 0 <= phi - 362 < o.get('lead', 4):
                            m += self.h2_load(phi - 362)
                    if ph == 'G0':
                        idx = 2 * phi + rt
                        ck = idx // 16 + 1
                        if idx % 16 == 0 and ck <= 8:
                            hi = self.x_reads(ck) + hi
                        refill = 3 if idx == 2 else (ck + 3 if (idx % 16 == 10 and ck + 3 <= 8) else None)
                        if refill is not None:
                            gl = [self.x_dma(refill, i) for i in range(8)]
                            gl[0][0].need_lgkm = [self.xrtok[refill - 3]]
                            hi += gl
                    k = 0
                    while (hi or side) and k < (2 if ph == 'G0' else 1):
                        m += hi.pop(0) if hi else side.pop(0)
                        k += 1
                    mains.append(m)
            if ph == 'U0':
                assert not side, len(side)
            if ph == 'PC':
                assert not hi
                while side:
                    mains[-1] += side.pop(0)
            P.add(interleave(mains, fills, budget, first=first, last=last))
            self.stamp()
            if o.get('stop') == ph:
                return False
        return True

    def h2_load(self, t):
        r = (t % HRING) * 8
        return mk(f'''s_add_u32 {sT2}, {sH2}, {t * 2048}
                      buffer_load_dwordx4 a[{r}:{r + 3}], {vLane16}, {SRD_WS}, {sT2} offen sc1
                      buffer_load_dwordx4 a[{r + 4}:{r + 7}], {vLane16}, {SRD_WS}, {sT2} offen offset:1024 sc1''')

    def tail(self):
        e, P = self.e, self.P
        lead = self.o.get('lead', 4)
        S = SET_S
        self.cur = 'tail_kv'
        P.add(self.barrier(lg=[self.kvsumtok]))
        e(f'''v_add_u32 {vKR}, {L_KVS}, {vLane16}
              ds_read_b128 {vr(S + 16, 4)}, {vKR}
              ds_read_b128 {vr(S + 20, 4)}, {vKR} offset:1024
              ds_read_b128 {vr(S + 24, 4)}, {vKR} offset:2048''')
        for rt in range(2):
            for ks in range(2):
                for p in range(2):
                    r = SET_A + rt * 8 + ks * 4 + p * 2
                    e(f'ds_read_b64_tr_b16 {vr(r, 2)}, {vPQr} offset:{(16 * ks + 8 * p) * 128 + rt * 64}')
        e(f'''s_lshl_b32 {sT}, {sWave}, 8
              s_add_u32 {sT}, {sT}, {L_G}
              v_and_b32 {vKW}, 31, {vLane}
              v_lshlrev_b32 {vKW}, 2, {vKW}
              v_add_u32 {vKW}, {sT}, {vKW}
              ds_read_b32 v{TMP + 4}, {vKW}
              ds_read_b32 v{TMP + 5}, {vKW} offset:128''')
        for i in range(6):
            e(f'v_cvt_pk_bf16_f32 v{S + i}, v{S + 16 + 2 * i}, v{S + 17 + 2 * i}')
        e(f'v_mov_b32 v{S + 6}, 0\nv_mov_b32 v{S + 7}, 0')
        for rt in range(2):
            D = SET_A + 16 + 16 * rt
            e(f'v_mfma_f32_32x32x16_bf16 {vr(D, 16)}, {vr(S, 4)}, {vr(SET_A + rt * 8, 4)}, 0')
            e(f'v_mfma_f32_32x32x16_bf16 {vr(D, 16)}, {vr(S + 4, 4)}, {vr(SET_A + rt * 8 + 4, 4)}, {vr(D, 16)}')
        hb = TMP + 8
        for rt in range(2):
            d = self.acc('PC', 0, rt)
            for b4 in range(0, 8, 4):
                t = [TMP + i for i in range(4)]
                g = [d + b4 + i for i in range(4)]
                for i in range(4): e(f'v_mul_f32 v{t[i]}, {NLOG2E}, v{g[i]}')
                for i in range(4): e(f'v_exp_f32 v{t[i]}, v{t[i]}')
                for i in range(4): e(f'v_add_f32 v{t[i]}, 1.0, v{t[i]}')
                for i in range(4): e(f'v_rcp_f32 v{t[i]}, v{t[i]}')
                for i in range(4): e(f'v_mul_f32 v{t[i]}, v{g[i]}, v{t[i]}')
                for i in range(4): e(f'v_mul_f32 v{t[i]}, v{t[i]}, v{g[i] + 8}')
                for i in range(2): e(f'v_cvt_pk_bf16_f32 v{hb + rt * 4 + b4 // 2 + i}, v{t[2 * i]}, v{t[2 * i + 1]}')
            e(f's_add_u32 {sT}, {sHP}, {rt * HB_W}')
            e(f'buffer_store_dwordx4 {vr(hb + rt * 4, 4)}, {vHP}, {SRD_WS}, {sT} offen sc1')
        for rt in range(2):
            D = SET_A + 16 + 16 * rt
            f, t = TMP + 6, [TMP + i for i in range(4)]
            pk = SET_S + 8 + rt * 8
            e(f'''v_cndmask_b32 v{f}, v{D + 8}, v{D + 10}, {M_LO}
                  v_add_f32 v{f}, {EPS}, v{f}
                  v_rcp_f32 v{f}, v{f}
                  s_add_u32 {sT}, {sOst}, {36 * 2048 + rt * HB_W}
                  v_mul_f32 v{f}, v{f}, v{TMP + 4 + rt}''')
            for grp in range(2):
                for i in range(4):
                    e(f'v_mul_f32 v{t[i]}, v{f}, v{D + 4 * grp + i}')
                e(f'''v_cvt_pk_bf16_f32 v{pk + 2 * grp}, v{t[0]}, v{t[1]}
                      v_cvt_pk_bf16_f32 v{pk + 2 * grp + 1}, v{t[2]}, v{t[3]}''')
            e(f'''v_mul_f32 v{t[0]}, v{f}, v{D + 8}
                  v_mul_f32 v{t[1]}, v{f}, v{D + 9}
                  v_mov_b32 v{pk + 5}, 0
                  v_mov_b32 v{pk + 6}, 0
                  v_mov_b32 v{pk + 7}, 0
                  v_cvt_pk_bf16_f32 v{pk + 4}, v{t[0]}, v{t[1]}
                  v_permlane32_swap_b32 v{pk}, v{pk + 2}
                  v_permlane32_swap_b32 v{pk + 1}, v{pk + 3}''')
            e(f'buffer_store_dwordx4 {vr(pk, 4)}, {vFa}, {SRD_WS}, {sT} offen sc1')
            e('s_mov_b32 exec_hi, 0')
            self.otok = Token('vm')
            e(f'buffer_store_dwordx4 {vr(pk + 4, 4)}, {vFe}, {SRD_WS}, {sT} offen sc1', tok=self.otok)
            e('s_mov_b64 exec, -1')

    def w2_read(self, t, nf, slot):
        addr = P2_SLOTS[(t // 4) % 4][t % 4] + nf * 1024
        base = (vLane16, vHi0, vHi1)[addr >> 16]
        b = WF2 + slot * 4
        return mk(f'ds_read_b128 {vr(b, 4)}, {base} offset:{addr & 0xffff}')

    def p2(self):
        e, P, o = self.e, self.P, self.o
        lead = o.get('lead', 4)
        e(f'''v_add_u32 {vHi0}, 0x10000, {vLane16}
              v_add_u32 {vHi1}, 0x20000, {vLane16}''')
        seq = [(t, nf) for t in range(NT) for nf in range(9)]
        side = []

        def bar2(S):
            vm = [self.w2tok[S]]
            if S == self.o.get('a1at', 2):
                vm.append(self.h1tok)
            if S == self.o.get('bat', 4):
                vm.append(self.otok)
            self.cur = f'p2_{S}'
            g = self.barrier(vm)
            post = []
            if S == self.o.get('a1at', 2):
                post.append(self.set_flag(f's_lshl_b32 {sT3}, {sJj}, 2\ns_add_u32 {sT3}, {sT3}, {sFlH}\ns_add_u32 {sT3}, {sT3}, 32', sT3))
            if S == self.o.get('bat', 4):
                post.append(self.set_flag(f's_lshl_b32 {sT3}, {sJj}, 2\ns_add_u32 {sT3}, {sT3}, {sFlH}\ns_add_u32 {sT3}, {sT3}, 64', sT3))
            if S + 2 <= 10:
                post += self.w2_groups(S + 2)
            return g, post
        g, post = bar2(0)
        P.add(g)
        for i in range(8):
            P.add(self.w2_read(*seq[i], i % 8))
        side += post
        e(f'''s_add_u32 s100, {sFlH}, 32
              s_add_u32 s101, {sFlH}, 64''')
        for i, (t, nf) in enumerate(seq):
            for rt in range(2):
                base = ACC_B if t < 36 else ACC_A
                d = base + (nf * 2 + rt) * 4
                c = '0' if t in (0, 36) else vr(d, 4)
                hr = (t % HRING) * 8 + rt * 4
                m = mk(f'v_mfma_f32_16x16x32_bf16 {vr(d, 4)}, {vr(WF2 + (i % 8) * 4, 4)}, a[{hr}:{hr + 3}], {c}')
                if rt == 1:
                    nxt = i + 8
                    if nxt < len(seq):
                        tn, nn = seq[nxt]
                        if nn == 0 and tn % 4 == 0:
                            g, post = bar2(tn // 4)
                            m += g
                            side += post
                        m += self.w2_read(tn, nn, nxt % 8)
                elif side:
                    m += side.pop(0)
                P.add(m)
            if nf == 8:
                tn = t + lead
                if tn == 14: side.append(self.poll_issue(vFc, vFb, SRD_WS, 's100'))
                if tn == 30: side.append(self.poll_issue(vFc, vFb, SRD_WS, 's101'))
                if tn == 16: P.add(self.poll_check(vFc, vFb, SRD_WS, 's100', '1'))
                if tn == 32: P.add(self.poll_check(vFc, vFb, SRD_WS, 's101', '1'))
                if tn < NT:
                    P.add(self.h2_load(tn))
        assert not side

    def final(self):
        e, P = self.e, self.P
        T = [TMP + i for i in range(16)]
        e(f'''s_and_b32 {sT}, {sJj}, 1
              s_lshl_b32 {sT}, {sT}, 9
              s_lshl_b32 {sT2}, {sWave}, 7
              s_add_u32 {sT}, {sT}, {sT2}
              s_add_u32 {sT}, {sT}, {L_G}
              v_and_b32 v{T[2]}, 15, {vLane}
              v_lshlrev_b32 v{T[3]}, 2, v{T[2]}
              v_add_u32 v{T[3]}, {sT}, v{T[3]}
              ds_read_b32 v{T[0]}, v{T[3]}
              ds_read_b32 v{T[1]}, v{T[3]} offset:64
              v_sub_f32 v{T[0]}, 1.0, v{T[0]}
              v_sub_f32 v{T[1]}, 1.0, v{T[1]}''')
        own, done = self.label('own'), self.label('put')
        self.cur = 'p2_end'
        P.add(self.cstamp())
        for ti in range(18):
            for i in range(4):
                r = ti * 4 + i
                e(f'v_fma_f32 v{ACC_B + r}, v{ACC_B + r}, v{T[ti % 2]}, v{ACC_A + r}')
        e(f's_cmp_eq_u32 {sWave}, {sKq}')
        e(f's_cbranch_scc1 {own}')
        txt = ''
        for nf in range(9):
            b = ACC_A + 4 * nf
            for rt in range(2):
                r = ACC_B + (nf * 2 + rt) * 4
                txt += f'v_cvt_pk_bf16_f32 v{b + 2 * rt}, v{r}, v{r + 1}\nv_cvt_pk_bf16_f32 v{b + 2 * rt + 1}, v{r + 2}, v{r + 3}\n'
            if nf % 4 == 0:
                txt += f's_add_u32 {sT}, {sYst}, {nf * 1024}\n'
            txt += f'buffer_store_dwordx4 {vr(b, 4)}, {vLane16}, {SRD_WS}, {sT} offen offset:{(nf % 4) * 1024} sc1\n'
        txt += f's_branch {done}\n{own}:\n'
        for ti in range(18):
            txt += f'ds_write_b128 {vHi0}, {vr(ACC_B + 4 * ti, 4)} offset:{L_OWN - 0x10000 + ti * 1024}\n'
        txt += f'{done}:\n'
        P.raw(txt)
        e('s_waitcnt lgkmcnt(0)')
        e('s_barrier')
        e(f'''s_lshl_b32 {sT3}, {sKq}, 9
              s_add_u32 {sT3}, {sT3}, {sFlY}
              v_and_b32 {vFb}, 3, {vLane}
              v_lshlrev_b32 {vFb}, 2, {vFb}
              v_mul_u32_u24 v{T[5]}, 1152, v{T[2]}
              v_lshrrev_b32 v{T[6]}, 4, {vLane}
              v_lshl_add_u32 v{T[5]}, v{T[6]}, 3, v{T[5]}
              s_lshl_b32 {sT}, {sWave}, 5
              s_add_u32 s100, {sOut}, {sT}''')
        srcs = ['s4', 's5', 's6']
        for i in range(3):
            e(f'''s_add_u32 {sT}, {sKq}, {i + 1}
                  s_and_b32 {sT}, {sT}, 3
                  s_mul_i32 {sT}, {sT}, {YP_SLOT}
                  s_add_u32 {srcs[i]}, {sT}, {sYld}
                  s_add_u32 {srcs[i]}, {srcs[i]}, {sLw1}''')
        e(f'''s_lshl_b32 {sT}, {sWave}, 11
              v_add_u32 v{T[7]}, {sT}, {vHi0}
              s_lshl_b32 {sT2}, {sWave}, 9
              s_lshl_b32 {sT}, {sKq}, 2
              s_add_u32 {sT}, {sT}, {sT2}
              s_add_u32 {sT}, {sT}, {sFlY}''')
        e('s_waitcnt vmcnt(0)')
        self.cur = 'y_stored'
        P.add(self.cstamp())
        e(f'''s_mov_b64 exec, 1
              buffer_store_dword {vOne}, off, {SRD_WS}, {sT} sc1
              s_mov_b64 exec, -1''')
        P.add(self.poll_issue(vPoll, vFb, SRD_WS, sT3))
        P.add(self.poll_check(vPoll, vFb, SRD_WS, sT3, '1'))
        self.cur = 'y_flagged'
        P.add(self.cstamp())

        def unit_loads(i, b):
            if i < 2:
                for j in range(3):
                    e(f's_add_u32 {sT}, {srcs[j]}, {i * 4096}')
                    e(f'buffer_load_dwordx4 {vr(b + 4 * j, 4)}, {vLane16}, {SRD_WS}, {sT} offen sc1')
                e(f'ds_read_b128 {vr(b + 12, 4)}, v{T[7]} offset:{L_OWN - 0x10000 + i * 8192}')
                e(f'ds_read_b128 {vr(b + 16, 4)}, v{T[7]} offset:{L_OWN - 0x10000 + i * 8192 + 1024}')
            else:
                for j in range(3):
                    e(f's_add_u32 {sT}, {srcs[j]}, 8192')
                    e(f'buffer_load_dwordx4 {vr(b + 4 * j, 4)}, {vLane16}, {SRD_WS}, {sT} offen sc1')
                e(f'ds_read_b128 {vr(b + 12, 4)}, v{T[7]} offset:{L_OWN - 0x10000 + 16384}')
                e(f'ds_read_b128 {vr(b + 16, 4)}, v{T[7]} offset:{L_OWN - 0x10000 + 17408}')

        def unit_sum(i, b):
            t0, t1 = T[8], T[9]
            for j in range(3):
                for rt in range(2):
                    for dd in range(2):
                        s = b + 4 * j + 2 * rt + dd
                        a = b + 12 + 4 * rt + 2 * dd
                        e(f'''v_lshlrev_b32 v{t0}, 16, v{s}
                              v_and_b32 v{t1}, 0xffff0000, v{s}
                              v_add_f32 v{a}, v{a}, v{t0}
                              v_add_f32 v{a + 1}, v{a + 1}, v{t1}''')
            for rt in range(2):
                a = b + 12 + 4 * rt
                e(f'''v_cvt_pk_bf16_f32 v{b + 2 * rt}, v{a}, v{a + 1}
                      v_cvt_pk_bf16_f32 v{b + 2 * rt + 1}, v{a + 2}, v{a + 3}
                      s_add_u32 {sT}, s100, {rt * 16 * 1152 + (i * 128 if i < 2 else 256)}
                      buffer_store_dwordx2 {vr(b + 2 * rt, 2)}, v{T[5]}, {SRD_OUT}, {sT} offen''')
        unit_loads(0, 0)
        unit_loads(1, 20)
        skip = self.label('skip')
        e(f's_cmp_lg_u32 {sWave}, 0')
        e(f's_cbranch_scc1 {skip}')
        txt = ''
        b = 40
        for j in range(3):
            txt += f's_add_u32 {sT}, {srcs[j]}, 8192\nbuffer_load_dwordx4 {vr(b + 4 * j, 4)}, {vLane16}, {SRD_WS}, {sT} offen sc1\n'
        txt += f'ds_read_b128 {vr(b + 12, 4)}, v{T[7]} offset:{L_OWN - 0x10000 + 16384}\n'
        txt += f'ds_read_b128 {vr(b + 16, 4)}, v{T[7]} offset:{L_OWN - 0x10000 + 17408}\n'
        txt += 's_waitcnt vmcnt(0) lgkmcnt(0)\n'
        t0, t1 = T[8], T[9]
        for j in range(3):
            for rt in range(2):
                for dd in range(2):
                    s = b + 4 * j + 2 * rt + dd
                    a = b + 12 + 4 * rt + 2 * dd
                    txt += f'v_lshlrev_b32 v{t0}, 16, v{s}\nv_and_b32 v{t1}, 0xffff0000, v{s}\nv_add_f32 v{a}, v{a}, v{t0}\nv_add_f32 v{a + 1}, v{a + 1}, v{t1}\n'
        for rt in range(2):
            a = b + 12 + 4 * rt
            txt += f'v_cvt_pk_bf16_f32 v{b + 2 * rt}, v{a}, v{a + 1}\nv_cvt_pk_bf16_f32 v{b + 2 * rt + 1}, v{a + 2}, v{a + 3}\n'
            txt += f's_add_u32 {sT}, s100, {rt * 16 * 1152 + 256}\nbuffer_store_dwordx2 {vr(b + 2 * rt, 2)}, v{T[5]}, {SRD_OUT}, {sT} offen\n'
        txt += 's_waitcnt vmcnt(0)\n'
        txt += f'{skip}:\n'
        P.raw(txt)
        unit_sum(0, 0)
        unit_sum(1, 20)

    def build(self):
        o = self.o
        self.plan_slots()
        self.prologue()
        go = self.p1()
        if go:
            self.tail()
            self.stamp()
            if o.get('stop') == 'tail':
                go = False
        if go:
            self.p2()
            self.stamp()
            self.final()
            self.stamp()
        self.e('s_waitcnt vmcnt(0) lgkmcnt(0)')
        if o.get('bstamp'):
            self.cur = 'end'
            self.P.add(self.cstamp())
            self.P.raw('s_waitcnt lgkmcnt(0)')
            self.P.add(self.cstamp())
            self.e(f'''s_lshl_b32 {sT}, {sWave}, 8
                       s_lshl_b32 {sT2}, {sBsId}, 10
                       s_add_u32 {sT}, {sT}, {sT2}
                       s_add_u32 {sT}, {sT}, {TS}
                       v_lshlrev_b32 v0, 2, {vLane}
                       buffer_store_dword {vSt}, v0, {SRD_WS}, {sT} offen
                       s_waitcnt vmcnt(0)''')
            open('cs_names.txt', 'w').write(' '.join(self.cs_names))
        self.P.emit('L_end:')
        self.e('s_endpgm')
        if o.get('drop'):
            import re
            keep = []
            for I in self.P.ins:
                if re.search(o['drop'], I.text):
                    J = mk('s_nop 0')[0]
                    J.need_vm, J.need_lgkm = I.need_vm, I.need_lgkm
                    if I.tok is not None:
                        I.tok.done = True
                    keep.append(J)
                else:
                    keep.append(I)
            self.P.ins = keep
        ins, st, nn = finalize(self.P.ins)
        body = render(ins)
        head = open('cdna_kernels/%s.s.ref' % KNAME[:-7]).read().split('; Override')[0] if o.get('header', 1) else ''
        txt = head
        txt += f'; @launch grid=(256,1,1) block=(256,1,1) lds={LDS_BYTES}\n'
        txt += '.amdgcn_target "amdgcn-amd-amdhsa--gfx950"\n.text\n'
        txt += f'.globl {KNAME}\n.p2align 8\n.type {KNAME},@function\n{KNAME}:\n'
        txt += body
        txt += f'''.section .rodata,"a"
.p2align 6
.amdhsa_kernel {KNAME}
  .amdhsa_next_free_vgpr 512
  .amdhsa_next_free_sgpr 102
  .amdhsa_accum_offset 256
  .amdhsa_group_segment_fixed_size 0
  .amdhsa_kernarg_size 88
  .amdhsa_user_sgpr_count 2
  .amdhsa_user_sgpr_kernarg_segment_ptr 1
  .amdhsa_system_sgpr_workgroup_id_x 1
  .amdhsa_float_denorm_mode_32 3
.end_amdhsa_kernel
'''
        info = dict(n=len(ins), nops=nn, waits=st, mfma=sum(1 for i in ins if i.kind == 'mfma'))
        return txt, info


def main():
    opt = {}
    out = 'k.s'
    for a in sys.argv[1:]:
        if '=' in a:
            k, v = a.split('=', 1)
            opt[k] = int(v) if v.lstrip('-').isdigit() else v
        else:
            out = a
    txt, info = Gen(opt).build()
    open(out, 'w').write(txt)
    print(out, info, len(txt), 'bytes')


if __name__ == '__main__':
    main()
```

```python
import sys
from asmlib import Prog, Token, mk, interleave, finalize, render

KNAME = 'gated_mix__linear_attn_block__swiglu_ffn__prompt_kernel'

NT = 42
HB = 0x0
HB_W = NT * 2048
WP = 0x1500000
WP_T = 36 * 1024
YP = 0x1B00000
YP_SLOT = 9 * 1024
KVP = 0x2E00000
FL = 0x2F00000
TS = 0x3000000
WS_SIZE = 0x10000000

K = 1024
SLOT_A = [0, 12 * K, 24 * K, 36 * K, 48 * K]
SLOT_X = [64 * K, 76 * K]
L_G = 60 * K
L_KVS = 61 * K
L_XS = 64 * K
L_PB = 88 * K
L_PQ = 124 * K
L_KVW = 140 * K
P2_SLOTS = {0: [88 * K + 9 * K * i for i in range(4)],
            1: [9 * K * i for i in range(4)],
            2: [124 * K + 9 * K * i for i in range(4)],
            3: [36 * K, 45 * K, 61 * K, 70 * K]}
L_OWN = 88 * K
LDS_BYTES = 160 * K
HRING = 16

sArr = 's0'
sBsId = 's1'
sTS = 's2'
sWave = 's3'
SRD_X, SRD_WG, SRD_WU, SRD_QKV, SRD_WS = 's[4:7]', 's[8:11]', 's[12:15]', 's[16:19]', 's[20:23]'
SRD_PC, SRD_PKS, SRD_PKD, SRD_OUT, SRD_DBG = 's[24:27]', 's[28:31]', 's[32:35]', 's[36:39]', 's[40:43]'
SRD_GW = SRD_OUT
sPf = 's44'
sT3 = 's45'
sPfq = 's94'
sKq, sMt, sJj, sNg, sMt128, sNq = 's48', 's49', 's50', 's51', 's52', 's53'
sXoff, sXlds, sWrow, sLw3, sQoff, sLw1, sPCoff, sHB0 = 's54', 's55', 's56', 's57', 's58', 's59', 's60', 's61'
sT, sT2 = 's62', 's63'
sPKsrc, sPKdst, sPKlds, sKK0, sTwo, sLim = 's64', 's65', 's66', 's67', 's68', 's69'
sFlKV, sFlH, sFlPK, sFlY, sKVst, sKVld = 's70', 's71', 's72', 's73', 's74', 's75'
sHP, sOst, sH2, sW2, sYst, sYld = 's76', 's77', 's78', 's79', 's80', 's81'
sCnt, sPKfl, sOut = 's82', 's84', 's85'
kqp, tp = 's100', 's101'
M_Q1, M_Q2, M_Z, M_7, M_GATE = 's[86:87]', 's[88:89]', 's[90:91]', 's[96:97]', 's[98:99]'
M_LO = 's[92:93]'
sZ = ['s4', 's5', 's6', 's7']
sO = ['s54', 's55', 's64']

SET_A, SET_B, SET_S = 0, 64, 128
XOV = 160
WF = 192
TMP = 208
vLane16, vGU, vTr0, vTr1, vHS, vQD, vTq0, vTq1, vPD, vTp, vHP, vGA = [f'v{i}' for i in range(224, 236)]
GATE0 = 236
vGL, vGR, vKW, vKR, vFa, vFb, vFc, vFd, vFe = [f'v{i}' for i in range(236, 245)]
vPKs, vPKr, vPQw, vPQr, vLane, vDum, vOne, vPoll, vHi0, vHi1, vSt = [f'v{i}' for i in range(245, 256)]
ACC_B, ACC_A, WF2 = 0, 72, 144

LOG2E = '0x3fb8aa3b'
NLOG2E = '0xbfb8aa3b'
EPS = '0x358637bd'


def vr(base, n):
    return f'v[{base}:{base + n - 1}]'


def xreg(rt, ks):
    if ks < 32:
        b = (ks * 2 + rt) * 4
        return f'a[{b}:{b + 3}]'
    b = XOV + ((ks - 32) * 2 + rt) * 4
    return f'v[{b}:{b + 3}]'


class Gen:
    def __init__(self, opt):
        self.o = opt
        self.P = Prog()
        self.nlabel = 0
        self.nstamp = 0
        self.xtok, self.xrtok, self.stok, self.gtok, self.ftok = {}, {}, {}, {}, {}
        self.ncs, self.cs_names, self.cur = 0, [], ''

    def label(self, stem):
        self.nlabel += 1
        return f'L_{stem}_{self.nlabel}'

    def e(self, text, **kw):
        return self.P.emit(text, **kw)

    def stamp(self):
        if not self.o.get('stamps'):
            return
        if self.nstamp == 0:
            self.e(f'''s_mov_b64 exec, 1
                       buffer_store_dword {vSt}, off, {SRD_WS}, {sTS}
                       s_mov_b64 exec, -1''')
            self.nstamp = 1
        i = self.nstamp
        self.nstamp += 1
        self.P.raw('s_memrealtime s[46:47]\ns_waitcnt lgkmcnt(0)')
        self.e('s_waitcnt lgkmcnt(0)')
        self.e(f'''v_mov_b32 {vSt}, s46
                   s_mov_b64 exec, 1
                   buffer_store_dword {vSt}, off, {SRD_WS}, {sTS} offset:{4 * i}
                   s_mov_b64 exec, -1''')

    def cstamp(self):
        if not self.o.get('bstamp'):
            return []
        i = self.ncs
        self.ncs += 1
        g = []
        if i > 1:
            g += mk(f'v_writelane_b32 {vSt}, s46, {i - 1}')
        P = Prog()
        P.raw('s_memtime s[46:47]')
        if i == 0:
            P.raw(f's_waitcnt lgkmcnt(0)\nv_writelane_b32 {vSt}, s46, 0')
        self.cs_names.append(self.cur)
        return g + P.ins

    def barrier(self, vm=(), lg=()):
        return mk('s_barrier', vm=list(vm), lgkm=list(lg)) + self.cstamp()

    def prologue(self):
        e = self.e
        e('s_cmp_ge_u32 s2, 256')
        e('s_cbranch_scc1 L_end')
        e('s_load_dwordx16 s[64:79], s[0:1], 0')
        e('s_load_dwordx4 s[80:83], s[0:1], 64')
        e('s_load_dwordx2 s[84:85], s[0:1], 80')
        T = [f'v{TMP + i}' for i in range(16)]
        e(f'''v_lshrrev_b32 {T[0]}, 6, v0
              v_and_b32 {vLane}, 63, v0
              v_readfirstlane_b32 {sWave}, {T[0]}
              v_lshlrev_b32 {vLane16}, 4, {vLane}
              v_mov_b32 {vOne}, 1''')
        e(f'''s_and_b32 {sKq}, s2, 3
              s_lshr_b32 {sT}, s2, 2
              s_and_b32 {sT}, {sT}, 1
              s_lshl_b32 {sT}, {sT}, 2
              s_lshr_b32 {sMt}, s2, 6
              s_add_u32 {sMt}, {sMt}, {sT}
              s_lshr_b32 {sJj}, s2, 3
              s_and_b32 {sJj}, {sJj}, 7
              s_lshl_b32 {sNg}, {sKq}, 3
              s_add_u32 {sNg}, {sNg}, {sJj}''')
        self.vXe, self.vXo = f'v{SET_B}', f'v{SET_B + 1}'
        self.vXr = [f'v{SET_B + 2 + i}' for i in range(4)]
        self.vPf = f'v{SET_B + 6}'
        r8, u8 = T[1], T[2]
        e(f'''v_lshrrev_b32 {r8}, 3, {vLane}
              v_and_b32 {u8}, 7, {vLane}
              v_lshrrev_b32 {T[3]}, 1, {r8}
              v_xor_b32 {T[4]}, {u8}, {T[3]}
              v_xor_b32 {T[5]}, 4, {T[4]}
              v_mul_u32_u24 {T[6]}, 1152, {r8}
              v_lshl_add_u32 {self.vXe}, {T[4]}, 4, {T[6]}
              v_lshl_add_u32 {self.vXo}, {T[5]}, 4, {T[6]}
              v_and_b32 {T[3]}, 1, {T[3]}
              v_lshlrev_b32 {T[3]}, 2, {T[3]}
              v_xor_b32 {T[3]}, {T[3]}, {u8}
              v_mul_u32_u24 {T[6]}, 9216, {r8}
              v_lshl_add_u32 {vGU}, {T[3]}, 4, {T[6]}''')
        e(f'''s_mul_i32 {sXoff}, {sMt}, {256 * 1152}
              s_mul_i32 {sT}, {sWave}, {64 * 1152}
              s_add_u32 {sXoff}, {sXoff}, {sT}
              s_mul_i32 {sXlds}, {sWave}, {24 * K}
              s_add_u32 {sXlds}, {sXlds}, {L_XS}
              s_mul_i32 {sWrow}, {sWave}, {24 * 9216}
              s_lshl_b32 {sT}, {sNg}, 8
              s_add_u32 {sWrow}, {sWrow}, {sT}
              s_mul_i32 {sLw3}, {sWave}, 3072
              s_lshl_b32 {sLw1}, {sWave}, 10''')
        if self.o.get('stamps'):
            self.P.raw('s_memrealtime s[46:47]')
        e('s_waitcnt lgkmcnt(0)')
        if self.o.get('stamps'):
            e(f'v_mov_b32 {vSt}, s46')

        def srd_text(s, lo, size):
            b = int(s[2:].split(':')[0])
            return f'''s_mov_b32 s{b}, s{lo}
                       s_mov_b32 s{b + 1}, s{lo + 1}
                       s_mov_b32 s{b + 2}, {size}
                       s_mov_b32 s{b + 3}, 0x20000'''
        e(srd_text(SRD_X, 64, 2048 * 1152))
        e(srd_text(SRD_WG, 72, 576 * 9216))
        if self.o.get('bstamp'):
            e(f's_mov_b32 {sBsId}, s2')
            self.cur = 'start'
            self.P.add(self.cstamp())
        self.issue_x(0)
        self.issue_stage(0)
        self.issue_x(1)
        self.issue_stage(1)
        self.issue_x(2)
        e(srd_text(SRD_WU, 74, 576 * 9216))
        e(srd_text(SRD_QKV, 66, 576 * 3456))
        self.issue_stage(2)
        self.issue_stage(3)
        self.issue_stage(4)
        if self.o.get('pfx', 1):
            e(f'''v_and_b32 {T[3]}, 31, {vLane}
                  v_mul_u32_u24 {T[3]}, 1152, {T[3]}
                  v_lshrrev_b32 {T[4]}, 5, {vLane}
                  v_lshl_add_u32 {T[3]}, {T[4]}, 7, {T[3]}
                  s_lshl_b32 {sT}, {sMt}, 3
                  s_add_u32 {sT}, {sT}, {sJj}
                  s_mul_i32 {sT}, {sT}, {32 * 1152}
                  s_lshl_b32 {sT2}, {sWave}, 8
                  s_add_u32 {sT}, {sT}, {sT2}
                  s_add_u32 {sT}, {sT}, 384''')
            g = mk(f'buffer_load_dword {vDum}, {T[3]}, {SRD_X}, {sT} offen')
            g[0].notrack = True
            self.P.add(g)
        if self.o.get('pfc', 0):
            g = mk(f'''s_getpc_b64 s[46:47]
                       L_pc_here:
                       s_lshr_b32 {sT}, s2, 3
                       s_lshl_b32 {sT}, {sT}, 2
                       s_add_u32 {sT}, {sT}, {sWave}
                       s_lshl_b32 {sT}, {sT}, 9
                       v_and_b32 {T[3]}, 3, {vLane}
                       v_lshlrev_b32 {T[3]}, 7, {T[3]}
                       v_add_u32 {T[3]}, {sT}, {T[3]}
                       v_min_u32 {T[3]}, L_end-L_pc_here, {T[3]}
                       global_load_dword {vDum}, {T[3]}, s[46:47]''')
            g[-1].notrack = True
            self.P.add(g)
        e(f'''s_mul_i32 {sPf}, {sMt}, 72
              s_mul_i32 {sT}, {sWave}, 18
              s_add_u32 {sPf}, {sPf}, {sT}
              s_mul_i32 {sPf}, {sPf}, 9216''')
        if self.o.get('pfu', 1):
            self.P.add(self.slab_pf(SRD_WU, f's_lshl_b32 {sT2}, {sNg}, 8', T[3]))
        e(f's_mul_i32 {sPfq}, s2, {61 * 128}')
        if self.o.get('pfq', 0) == 0:
            self.P.add(self.qkv_pf(T[3]))
        m, hh, sw = T[0], T[1], T[2]
        e(f'''v_and_b32 {m}, 31, {vLane}
              v_lshrrev_b32 {hh}, 5, {vLane}
              v_lshrrev_b32 {sw}, 1, {m}
              v_and_b32 {sw}, 7, {sw}
              v_xor_b32 {sw}, {sw}, {hh}
              v_lshlrev_b32 {T[3]}, 7, {m}
              v_add_u32 {T[3]}, {sXlds}, {T[3]}''')
        for ks4 in range(4):
            e(f'''v_xor_b32 {T[4]}, {2 * ks4}, {sw}
                  v_lshl_add_u32 {self.vXr[ks4]}, {T[4]}, 4, {T[3]}''')
        gs, rp, c = T[6], T[7], T[8]
        row = T[9]
        e(f'''v_bfe_u32 {gs}, {vLane}, 4, 1
              v_bfe_u32 {rp}, {vLane}, 2, 2
              v_and_b32 {c}, 3, {vLane}
              v_lshl_add_u32 {row}, {hh}, 3, {rp}
              v_and_b32 {T[10]}, 1, {c}
              v_lshl_add_u32 {T[10]}, {T[10]}, 1, {gs}
              v_lshrrev_b32 {T[11]}, 1, {c}
              v_lshlrev_b32 {T[11]}, 3, {T[11]}
              v_lshl_add_u32 {T[11]}, {T[10]}, 4, {T[11]}
              v_lshl_add_u32 {T[11]}, {row}, 7, {T[11]}
              v_lshrrev_b32 {T[12]}, 1, {rp}
              v_lshl_add_u32 {vTr0}, {T[12]}, 6, {T[11]}
              v_xor_b32 {T[12]}, 1, {T[12]}
              v_lshl_add_u32 {vTr1}, {T[12]}, 6, {T[11]}''')

        D = self.deferred = []

        def d(text, **kw):
            D.append(mk(text, **kw))
        d(srd_text(SRD_WS, 84, WS_SIZE))
        d(srd_text(SRD_DBG, 82, 256))
        d(srd_text(SRD_GW, 78, 1152))
        d(f'''v_and_b32 {T[11]}, 15, {vLane}
              s_lshl_b32 {sT}, {sWave}, 4
              v_add_u32 {T[11]}, {sT}, {T[11]}
              v_lshlrev_b32 {T[12]}, 6, {T[11]}
              v_add_u32 {vGA}, 48, {T[12]}
              v_lshlrev_b32 {T[11]}, 1, {T[11]}''')
        for st in range(0, 9, 3):
            d('\n'.join(f'buffer_load_ushort v{GATE0 + i}, {T[11]}, {SRD_GW}, 0 offen offset:{128 * i}' for i in range(st, st + 3)))
        d(srd_text(SRD_OUT, 80, 2048 * 1152))
        d(f'''s_cmp_lt_u32 {sWave}, 2
              s_cselect_b32 s24, s72, s74
              s_cselect_b32 s25, s73, s75
              s_mov_b32 s26, {576 * 9216}
              s_mov_b32 s27, 0x20000''')
        d(f'''s_mul_i32 {kqp}, s2, 1561
              s_lshr_b32 {kqp}, {kqp}, 16
              s_mul_i32 {sT}, {kqp}, 42
              s_sub_u32 {tp}, s2, {sT}
              s_cmp_ge_u32 {tp}, 36
              s_cselect_b32 s28, s68, s76
              s_cselect_b32 s29, s69, s77
              s_mov_b32 s30, {4608 * 1152}
              s_cselect_b32 s30, {576 * 1152}, s30
              s_mov_b32 s31, 0x20000''')
        d(f'''s_mov_b32 s32, s84
              s_mov_b32 s33, s85
              s_mov_b32 s34, {WS_SIZE}
              s_mov_b32 s35, 0x20000
              s_cmp_ge_u32 s2, 168
              s_cselect_b32 s30, 0, s30
              s_cselect_b32 s34, 0, s34''')
        d(f'''s_and_b32 {sT}, {tp}, 15
              s_lshr_b32 {sT}, {sT}, 1
              s_lshl_b32 {sT2}, {kqp}, 3
              s_add_u32 {sT}, {sT}, {sT2}
              s_lshl_b32 {sT}, {sT}, 1
              s_lshr_b32 {sT2}, {tp}, 4
              s_add_u32 {sT}, {sT}, {sT2}
              s_lshl_b32 {sT}, {sT}, 6
              s_and_b32 {sT2}, {tp}, 1
              s_lshl_b32 {sT2}, {sT2}, 5
              s_add_u32 {sPKsrc}, {sT}, {sT2}''')
        d(f'''s_lshl_b32 {sT}, {kqp}, 7
              s_add_u32 {sT}, {sT}, {4096 - 32 * 32}
              s_lshl_b32 {sT2}, {tp}, 5
              s_add_u32 {sT}, {sT}, {sT2}
              s_cmp_ge_u32 {tp}, 32
              s_cselect_b32 {sPKsrc}, {sT}, {sPKsrc}
              s_mul_i32 {sT}, {kqp}, 144
              s_cmp_ge_u32 {tp}, 36
              s_cselect_b32 {sPKsrc}, {sT}, {sPKsrc}
              s_cselect_b32 {sTwo}, 6, 0
              s_cselect_b32 {sLim}, 18, 64''')
        d(f'''s_sub_u32 {sT}, {tp}, 36
              s_lshl_b32 {sT}, {sT}, 5
              s_cmp_ge_u32 {tp}, 36
              s_cselect_b32 {sKK0}, {sT}, 0
              s_mul_i32 {sPKsrc}, {sPKsrc}, 1152
              s_mul_i32 {sT}, {kqp}, {NT}
              s_add_u32 {sT}, {sT}, {tp}
              s_mul_i32 {sPKdst}, {sT}, {WP_T}
              s_add_u32 {sPKdst}, {sPKdst}, {WP}
              s_add_u32 {sPKdst}, {sPKdst}, {sLw1}
              s_mul_i32 {sPKlds}, {sWave}, 9216
              s_add_u32 {sPKlds}, {sPKlds}, {L_PB}''')
        d(f'''s_lshl_b32 {sT}, {kqp}, 1
              s_lshr_b32 {sT2}, {tp}, 5
              s_add_u32 {sT}, {sT}, {sT2}
              s_lshl_b32 {sT}, {sT}, 9
              s_and_b32 {sT2}, {tp}, 31
              s_lshl_b32 {sT2}, {sT2}, 2
              s_add_u32 {sT}, {sT}, {sT2}
              s_add_u32 {sPKfl}, {sT}, {FL + 384}''')
        d(f'''s_lshl_b32 {sT}, s2, 9
              s_add_u32 {sT}, {sT}, {FL}
              v_mov_b32 {T[12]}, 0
              v_mov_b32 {T[13]}, 0
              v_mov_b32 {T[14]}, 0
              v_mov_b32 {T[15]}, 0
              s_mov_b32 exec_hi, 0
              buffer_store_dwordx4 {vr(TMP + 12, 4)}, {vLane16}, {SRD_WS}, {sT} offen sc1
              s_mov_b64 exec, -1''')
        self.ztok = Token('vm')
        D[-1][-2].tok = self.ztok
        d(f'''s_and_b32 {sArr}, s2, 63
              s_lshl_b32 {sArr}, {sArr}, 2
              s_and_b32 {sT}, {sJj}, 1
              s_lshl_b32 {sMt128}, {sMt}, 1
              s_add_u32 {sMt128}, {sMt128}, {sT}
              s_lshr_b32 {sNq}, {sJj}, 1''')
        if self.o.get('stamps'):
            d(f'''s_lshl_b32 s2, s2, 8
                  s_add_u32 s2, s2, {TS}''')
        d(f'''s_mul_i32 {sQoff}, {sWave}, {16 * 3456}
              s_mul_i32 {sT}, {sNg}, 36
              s_add_u32 {sQoff}, {sQoff}, {sT}
              s_and_b32 {sT}, {sWave}, 1
              s_mul_i32 {sPCoff}, {sT}, {96 * 9216}
              s_lshl_b32 {sT}, {sNg}, 5
              s_add_u32 {sPCoff}, {sPCoff}, {sT}
              s_add_u32 {sPCoff}, {sPCoff}, 8192''')
        d(f'''s_lshr_b32 {sT}, {sWave}, 1
              s_lshl_b32 {sT2}, {sMt}, 1
              s_add_u32 {sT}, {sT}, {sT2}
              s_lshl_b32 {sT}, {sT}, 2
              s_add_u32 {sT}, {sT}, {sKq}
              s_lshl_b32 {sT}, {sT}, 2
              s_and_b32 {sT2}, {sWave}, 1
              s_lshl_b32 {sT2}, {sT2}, 1
              s_add_u32 {sT}, {sT}, {sT2}
              s_mul_i32 {sOst}, {sT}, {HB_W}''' + (f'\ns_add_u32 {sOst}, {sOst}, {HB}' if HB else ''))
        d(f'''s_lshl_b32 {sT}, {sJj}, 12
              s_add_u32 {sHB0}, {sOst}, {sT}
              s_lshr_b32 {sT}, {sJj}, 1
              s_add_u32 {sT}, {sT}, 32
              s_lshl_b32 {sT}, {sT}, 11
              s_add_u32 {sHP}, {sOst}, {sT}
              s_and_b32 {sT}, {sJj}, 1
              s_lshl_b32 {sT}, {sT}, 9
              s_add_u32 {sHP}, {sHP}, {sT}''')
        d(f'''s_lshl_b32 {sT}, {sNg}, 9
              s_add_u32 {sFlKV}, {sT}, {FL + 128}
              s_lshl_b32 {sT}, {sMt}, 2
              s_add_u32 {sT}, {sT}, {sKq}
              s_lshl_b32 {sT}, {sT}, 9
              s_add_u32 {sFlH}, {sT}, {FL + 256}
              s_lshl_b32 {sT}, {sKq}, 10
              s_add_u32 {sFlPK}, {sT}, {FL + 384}''')
        d(f'''s_lshl_b32 {sT}, {sMt128}, 2
              s_add_u32 {sT}, {sT}, {sNq}
              s_lshl_b32 {sT}, {sT}, 2
              s_lshl_b32 {sFlY}, {sT}, 9
              s_add_u32 {sFlY}, {sFlY}, {FL}''')
        d(f'''s_min_u32 {sT2}, {sWave}, 2
              s_lshl_b32 {sT2}, {sT2}, 10
              s_mul_i32 {sT}, {sNg}, {8 * 3072}
              s_add_u32 {sT}, {sT}, {KVP}
              s_add_u32 {sKVld}, {sT}, {sT2}
              s_mul_i32 {sT}, {sMt}, 3072
              s_add_u32 {sKVst}, {sKVld}, {sT}''')
        d(f'''s_lshl_b32 {sT}, {sMt128}, 2
              s_add_u32 {sT}, {sT}, {sKq}
              s_lshl_b32 {sT}, {sT}, 2
              s_add_u32 {sT}, {sT}, {sWave}
              s_mul_i32 {sH2}, {sT}, {HB_W}
              s_mul_i32 {sW2}, {sKq}, {NT * WP_T}
              s_mul_i32 {sT}, {sNq}, 9216
              s_add_u32 {sW2}, {sW2}, {sT}
              s_add_u32 {sW2}, {sW2}, {WP}''')
        d(f'''s_lshl_b32 {sT}, {sMt128}, 2
              s_add_u32 {sT}, {sT}, {sNq}
              s_lshl_b32 {sT}, {sT}, 2
              s_add_u32 {sT2}, {sT}, {sWave}
              s_lshl_b32 {sT2}, {sT2}, 2
              s_add_u32 {sT2}, {sT2}, {sKq}
              s_mul_i32 {sYst}, {sT2}, {YP_SLOT}
              s_add_u32 {sYst}, {sYst}, {YP}
              s_add_u32 {sT2}, {sT}, {sKq}
              s_lshl_b32 {sT2}, {sT2}, 2
              s_mul_i32 {sYld}, {sT2}, {YP_SLOT}
              s_add_u32 {sYld}, {sYld}, {YP}''')
        d(f'''s_lshl_b32 {sT}, {sMt128}, 2
              s_add_u32 {sT}, {sT}, {sKq}
              s_mul_i32 {sOut}, {sT}, {32 * 1152}
              s_mul_i32 {sT}, {sNq}, 288
              s_add_u32 {sOut}, {sOut}, {sT}''')
        txt = ''
        for mm, pat in ((M_Q1, 0xFFF00000), (M_Q2, 0x03F00000), (M_Z, 0x00140000), (M_7, 0x77777777), (M_GATE, 0x10000000)):
            b = int(mm[2:].split(':')[0])
            txt += f's_mov_b32 s{b}, {hex(pat)}\ns_mov_b32 s{b + 1}, {hex(pat)}\n'
        d(txt + 's_mov_b32 s92, -1\ns_mov_b32 s93, 0')
        d(f'''v_lshrrev_b32 {T[4]}, 4, {m}
              v_lshlrev_b32 {T[4]}, 10, {T[4]}
              v_and_b32 {T[5]}, 15, {m}
              v_lshl_add_u32 {T[4]}, {T[5]}, 4, {T[4]}
              v_lshl_add_u32 {vHS}, {hh}, 9, {T[4]}
              v_lshl_add_u32 {vHP}, {hh}, 8, {T[4]}
              v_add_u32 {vHi0}, 0x10000, {vTr0}
              v_add_u32 {vHi1}, 0x10000, {vTr1}''')
        d(f'''v_mul_u32_u24 {T[10]}, 6144, {gs}
              v_lshl_add_u32 {T[10]}, {row}, 5, {T[10]}
              v_and_b32 {T[11]}, 1, {c}
              v_lshl_add_u32 {T[10]}, {T[11]}, 4, {T[10]}
              v_lshrrev_b32 {T[11]}, 1, {c}
              v_lshl_add_u32 {vTp}, {T[11]}, 3, {T[10]}''')
        g8 = T[10]
        d(f'''v_lshl_add_u32 {g8}, {gs}, 2, {c}
              v_lshlrev_b32 {T[11]}, 6, {row}
              v_lshlrev_b32 {T[12]}, 3, {g8}
              v_add_u32 {T[13]}, 4096, {T[12]}
              v_add_u32 {T[14]}, -40, {T[12]}
              v_cmp_gt_u32 vcc, 5, {g8}
              v_cndmask_b32 {T[13]}, {T[14]}, {T[13]}, vcc
              v_add_u32 {vTq0}, {T[13]}, {T[11]}''')
        d(f'''v_add_u32 {T[13]}, 8192, {T[12]}
              v_add_u32 {T[14]}, -16, {T[12]}
              v_cmp_gt_u32 vcc, 5, {g8}
              v_cndmask_b32 {T[14]}, {T[14]}, {T[13]}, vcc
              v_mov_b32 {T[13]}, 48
              v_cmp_eq_u32 vcc, 7, {g8}
              v_cndmask_b32 {T[14]}, {T[14]}, {T[13]}, vcc
              v_add_u32 {vTq1}, {T[14]}, {T[11]}''')
        d(f'''v_lshrrev_b32 {T[11]}, 2, {vLane}
              v_mul_u32_u24 {T[11]}, 3456, {T[11]}
              v_lshl_add_u32 {vQD}, {c}, 4, {T[11]}
              v_lshrrev_b32 {T[11]}, 1, {vLane}
              v_mul_u32_u24 {T[11]}, 9216, {T[11]}
              v_and_b32 {T[12]}, 1, {vLane}
              v_lshl_add_u32 {vPD}, {T[12]}, 4, {T[11]}''')
        r8 = T[12]
        d(f'''v_lshrrev_b32 {r8}, 3, {vLane}
              s_lshl_b32 {sT}, {sWave}, 3
              v_add_u32 {r8}, {sT}, {r8}
              v_add_u32 {T[13]}, {sKK0}, {r8}
              v_mul_u32_u24 {T[14]}, 2731, {T[13]}
              v_lshrrev_b32 {T[14]}, 16, {T[14]}
              v_mul_u32_u24 {T[15]}, 24, {T[14]}
              v_sub_u32 {T[15]}, {T[13]}, {T[15]}''')
        d(f'''v_mul_lo_u32 {T[14]}, {T[14]}, {sTwo}
              v_sub_u32 {T[13]}, {T[13]}, {T[14]}
              v_mul_u32_u24 {T[13]}, 1152, {T[13]}
              v_and_b32 {T[14]}, 7, {vLane}
              v_lshl_add_u32 {T[13]}, {T[14]}, 4, {T[13]}
              v_mov_b32 {T[14]}, 0x7fff0000
              v_cmp_gt_u32 vcc, {sLim}, {T[15]}
              v_cndmask_b32 {vPKs}, {T[14]}, {T[13]}, vcc''')
        d(f'''v_lshrrev_b32 {T[13]}, 4, {vLane}
              v_mul_u32_u24 {T[13]}, 9216, {T[13]}
              v_lshl_add_u32 {T[13]}, {rp}, 7, {T[13]}
              v_lshl_add_u32 {T[13]}, {c}, 3, {T[13]}
              s_lshl_b32 {sT}, {sWave}, 5
              s_add_u32 {sT}, {sT}, {L_PB}
              v_add_u32 {vPKr}, {sT}, {T[13]}''')
        d(f'''s_lshl_b32 {sT}, {sWave}, 12
              s_add_u32 {sT}, {sT}, {L_PQ}
              v_add_u32 {T[13]}, -20, {m}
              v_lshlrev_b32 {T[13]}, 7, {T[13]}
              v_lshl_add_u32 {T[13]}, {hh}, 3, {T[13]}
              v_add_u32 {vPQw}, {sT}, {T[13]}
              v_lshl_add_u32 {T[13]}, {hh}, 2, {rp}
              v_lshlrev_b32 {T[13]}, 7, {T[13]}
              v_lshl_add_u32 {T[13]}, {gs}, 5, {T[13]}
              v_lshl_add_u32 {T[13]}, {c}, 3, {T[13]}
              v_add_u32 {vPQr}, {sT}, {T[13]}''')

    def qkv_pf(self, t):
        g = mk(f'''v_min_u32 {t}, 15, {vLane}
                   v_lshlrev_b32 {t}, 7, {t}
                   s_lshl_b32 {sT2}, {sWave}, 11
                   s_add_u32 {sT}, {sPfq}, {sT2}
                   buffer_load_dword {vDum}, {t}, {SRD_QKV}, {sT} offen''')
        g[-1].notrack = True
        return g

    def slab_pf(self, srd, col_text, t):
        g = mk(f'''{col_text}
                   s_add_u32 {sT}, {sPf}, {sT2}
                   v_min_u32 {t}, 17, {vLane}
                   v_mul_u32_u24 {t}, 9216, {t}
                   buffer_load_dword {vDum}, {t}, {srd}, {sT} offen''')
        g[-1].notrack = True
        return g

    def x_dma(self, ck, i):
        slot = (ck % 3) * 8192
        v = self.vXe if i % 2 == 0 else self.vXo
        tok = Token('vm')
        g = mk(f'''s_add_u32 m0, {sXlds}, {slot + i * 1024}
                   s_add_u32 {sT}, {sXoff}, {i * 8 * 1152 + ck * 128}
                   buffer_load_dwordx4 {v}, {SRD_X}, {sT} offen lds''', tok=tok)
        self.xtok[ck] = tok
        return g

    def issue_x(self, ck):
        for i in range(8):
            self.P.add(self.x_dma(ck, i))

    def stage_info(self, s):
        if s < 6: return ('G', 0, s)
        if s < 12: return ('U', 0, s - 6)
        if s < 21: return ('Q', 0, s - 12)
        if s < 27: return ('G', 1, s - 21)
        if s < 33: return ('U', 1, s - 27)
        return ('P', 0, s - 33)

    def stage_groups(self, s):
        kind, blk, st = self.stage_info(s)
        slot = self.slot[s]
        gs = []
        for ii in range(3):
            tok = Token('vm')
            if kind in 'GU':
                srd = SRD_WG if kind == 'G' else SRD_WU
                g = mk(f'''s_add_u32 m0, {sLw3}, {slot + ii * 1024}
                           s_add_u32 {sT}, {sWrow}, {(96 * st + 8 * ii) * 9216 + 128 * blk}
                           buffer_load_dwordx4 {vGU}, {srd}, {sT} offen lds''', tok=tok)
            elif kind == 'Q':
                g = mk(f'''s_add_u32 m0, {sLw1}, {slot + ii * 4096}
                           s_add_u32 {sT}, {sQoff}, {64 * st * 3456 + ii * 1152}
                           s_mov_b64 exec, {M_7}
                           buffer_load_dwordx4 {vQD}, {SRD_QKV}, {sT} offen lds
                           s_mov_b64 exec, -1''')
                g[3].tok = tok
            else:
                g = mk(f'''s_add_u32 m0, {sLw3}, {slot + ii * 1024}
                           s_add_u32 {sT}, {sPCoff}, {(192 * st + 32 * ii) * 9216}
                           buffer_load_dwordx4 {vPD}, {SRD_PC}, {sT} offen lds''', tok=tok)
            gs.append(g)
        self.stok[s] = tok
        if kind == 'Q':
            gt = Token('lg')
            if slot < 64 * K:
                gs.append(mk(f'ds_write_b16 {vGA}, v{GATE0 + st} offset:{slot}', tok=gt))
            else:
                gs.append(mk(f'''v_add_u32 {vPoll}, 0x10000, {vGA}
                                 ds_write_b16 {vPoll}, v{GATE0 + st} offset:{slot - 64 * K}''', tok=gt))
            self.gtok[s] = gt
        return gs

    def issue_stage(self, s):
        for g in self.stage_groups(s):
            self.P.add(g)

    def plan_slots(self):
        self.slot = {s: SLOT_A[s] for s in range(5)}
        free, nxt, issue = [], 5, {}
        for b in range(1, 36):
            if b >= 2:
                free.append(self.slot[b - 2])
            if b == 7:
                free += SLOT_X
            issue[b] = []
            while free and nxt < 36:
                if nxt >= 33:
                    cand = [x for x in free if x >= 36 * K]
                    if not cand:
                        break
                    free.remove(cand[0])
                    self.slot[nxt] = cand[0]
                else:
                    self.slot[nxt] = free.pop(0)
                issue[b].append(nxt)
                nxt += 1
        assert nxt == 36
        self.issue = issue

    PH = [('G0', 0, 72, 0), ('U0', 72, 144, 6), ('QKV', 144, 216, 12), ('G1', 216, 288, 21), ('U1', 288, 360, 27), ('PC', 360, 396, 33)]

    def frag_info(self, phi):
        for ph, f0, f1, s0 in self.PH:
            if phi < f1:
                break
        j = phi - f0
        if ph == 'PC':
            return (s0 + j // 12, j % 12, 0, j, ph)
        ks, ct = j // 2, j % 2
        per = 4 if ph == 'QKV' else 6
        return (s0 + ks // per, ks % per, ct, ks, ph)

    def frag_load(self, phi):
        s, kin, ct, ks, ph = self.frag_info(phi)
        slot = self.slot[s]
        b = WF + (phi % 4) * 4
        hi = slot >= 64 * K
        if hi:
            slot -= 64 * K
        if ph == 'QKV':
            a, off, dp = (vTq0, vTq1)[ct], slot + kin * 1024, 256
        elif ph == 'PC':
            a, off, dp = vTp, slot + kin * 512, 128
        else:
            a, off, dp = (vTr0, vTr1)[ct], slot + kin * 2048, 512
        if hi:
            a = (vHi0, vHi1)[ct]
        tok = Token('lg')
        self.ftok[phi] = tok
        return mk(f'''ds_read_b64_tr_b16 {vr(b, 2)}, {a} offset:{off}
                      ds_read_b64_tr_b16 {vr(b + 2, 2)}, {a} offset:{off + dp}''', tok=tok)

    def first_frag(self, s):
        for ph, f0, f1, s0 in reversed(self.PH):
            if s >= s0:
                per = 8 if ph == 'QKV' else 12
                return f0 + per * (s - s0)

    def acc(self, ph, ct, rt):
        base = {'G0': SET_A, 'U0': SET_B, 'QKV': SET_A, 'G1': SET_B, 'U1': SET_A, 'PC': SET_B}[ph]
        return base + (ct * 2 + rt) * 16

    def mfma(self, phi, rt):
        s, kin, ct, ks, ph = self.frag_info(phi)
        d = self.acc(ph, ct, rt)
        w = vr(WF + (phi % 4) * 4, 4)
        x = xreg(rt, ks)
        c = '0' if ks == 0 else vr(d, 16)
        lg = None
        if self.o.get('pairwait', 0) and rt == 0 and phi % 2 == 0 and phi + 1 in self.ftok:
            lg = [self.ftok[phi + 1]]
        if ph == 'QKV':
            return mk(f'v_mfma_f32_32x32x16_bf16 {vr(d, 16)}, {x}, {w}, {c}', lgkm=lg)
        return mk(f'v_mfma_f32_32x32x16_bf16 {vr(d, 16)}, {w}, {x}, {c}', lgkm=lg)

    def x_reads(self, ck):
        out = []
        slot = (ck % 3) * 8192
        for ks4 in range(4):
            for rt in range(2):
                tok = Token('lg')
                out.append(mk(f'ds_read_b128 {xreg(rt, 4 * ck + ks4)}, {self.vXr[ks4]} offset:{slot + rt * 4096}', tok=tok,
                              vm=[self.xtok[ck]] if not out else None))
        self.xrtok[ck] = tok
        return out

    def silu_stream(self, src, order):
        out = []
        for n, b in enumerate(order):
            t = [TMP + (n % 2) * 4 + i for i in range(4)]
            g = [src + b + i for i in range(4)]
            for i in range(4): out += mk(f'v_mul_f32 v{t[i]}, {NLOG2E}, v{g[i]}')
            for i in range(4): out += mk(f'v_exp_f32 v{t[i]}, v{t[i]}')
            for i in range(4): out += mk(f'v_add_f32 v{t[i]}, 1.0, v{t[i]}')
            for i in range(4): out += mk(f'v_rcp_f32 v{t[i]}, v{t[i]}')
            for i in range(4): out += mk(f'v_mul_f32 v{t[i]}, v{g[i]}, v{t[i]}')
            for i in range(2): out += mk(f'v_cvt_pk_bf16_f32 v{SET_S + b // 2 + i}, v{t[2 * i]}, v{t[2 * i + 1]}')
        return out

    def h_stream(self, blk, usrc):
        out = []
        tok = None
        hb = TMP + 8
        for ct in range(2):
            for rt in range(2):
                ti = ct * 2 + rt
                for half in range(2):
                    for d in range(0, 4, 2):
                        dd = [half * 4 + d, half * 4 + d + 1]
                        s = [SET_S + ti * 8 + x for x in dd]
                        u = [usrc + ti * 16 + 2 * dd[0] + i for i in range(4)]
                        t = [TMP + i for i in range(4)]
                        out += mk(f'v_lshlrev_b32 v{t[0]}, 16, v{s[0]}')
                        out += mk(f'v_and_b32 v{t[1]}, 0xffff0000, v{s[0]}')
                        out += mk(f'v_lshlrev_b32 v{t[2]}, 16, v{s[1]}')
                        out += mk(f'v_and_b32 v{t[3]}, 0xffff0000, v{s[1]}')
                        for i in range(4): out += mk(f'v_mul_f32 v{t[i]}, v{t[i]}, v{u[i]}')
                        out += mk(f'v_cvt_pk_bf16_f32 v{hb + dd[0]}, v{t[0]}, v{t[1]}')
                        out += mk(f'v_cvt_pk_bf16_f32 v{hb + dd[1]}, v{t[2]}, v{t[3]}')
                    tok = Token('vm')
                    off = rt * HB_W + (16 * blk + ct) * 2048
                    out.append(mk(f'''s_add_u32 {sT2}, {sHB0}, {off}
                                      buffer_store_dwordx4 {vr(hb + half * 4, 4)}, {vHS}, {SRD_WS}, {sT2} offen offset:{half * 256} sc1''', tok=tok))
        return out, tok

    def phi_ops(self, x, u, t):
        return [f'v_min_f32 v{t}, 0, v{x}', f'v_max_f32 v{u}, 0, v{x}', f'v_mul_f32 v{t}, {LOG2E}, v{t}',
                f'v_exp_f32 v{t}, v{t}', f'v_add_f32 v{u}, {EPS}, v{u}', f'v_add_f32 v{u}, v{u}, v{t}']

    def attn_stream(self):
        out = []
        D1, D3 = SET_S, SET_S + 16
        ones = SET_A + 8
        u = [TMP + i for i in range(4)]
        t = [TMP + 4 + i for i in range(4)]
        pq = TMP + 8
        out.append(mk(f'''s_lshl_b32 {sT2}, {sWave}, 12
                          s_add_u32 {sT2}, {sT2}, {L_PQ + 2048}
                          v_add_u32 v{pq + 4}, {sT2}, {vLane16}
                          v_mov_b32 v{pq}, 0
                          v_mov_b32 v{pq + 1}, 0'''))
        out.append(mk(f'''v_mov_b32 v{pq + 2}, 0
                          v_mov_b32 v{pq + 3}, 0
                          ds_write_b128 v{pq + 4}, {vr(pq, 4)}
                          ds_write_b128 v{pq + 4}, {vr(pq, 4)} offset:1024'''))
        for rt in range(2):
            t1 = self.acc('QKV', 0, rt)
            t2 = self.acc('QKV', 1, rt)
            for b in range(0, 16, 4):
                seqs = [self.phi_ops(t1 + b + i, u[i], t[i]) for i in range(4)]
                for k in range(6):
                    for i in range(4): out += mk(seqs[i][k])
                for i in range(2): out += mk(f'v_cvt_pk_bf16_f32 v{t1 + b // 2 + i}, v{u[2 * i]}, v{u[2 * i + 1]}')
            out.append(mk(f's_mov_b64 exec, {M_Q1}\n' +
                          '\n'.join(f'ds_write_b64 {vPQw}, {vr(t1 + 2 * gq, 2)} offset:{(32 * rt + 8 * gq) * 2}' for gq in range(4)) +
                          '\ns_mov_b64 exec, -1'))
            if rt == 0:
                for i in range(4): out += mk(f'v_mov_b32 v{ones + i}, 0x3f803f80')
            out.append(mk(f's_mov_b64 exec, {M_GATE}\n' +
                          '\n'.join(f'ds_write_b128 {vGL}, {vr(t2 + 4 * gq, 4)} offset:{(32 * rt + 8 * gq) * 4}' for gq in range(4)) +
                          '\ns_mov_b64 exec, -1'))
            for b in range(0, 16, 4):
                seqs = [self.phi_ops(t2 + b + i, u[i], t[i]) for i in range(4)]
                for k in range(6):
                    for i in range(4): out += mk(seqs[i][k])
                for i in range(2): out += mk(f'v_cvt_pk_bf16_f32 v{pq + b // 2 + i}, v{u[2 * i]}, v{u[2 * i + 1]}')
                for i in range(2): out += mk(f'v_cvt_pk_bf16_f32 v{t2 + b // 2 + i}, v{t2 + b + 2 * i}, v{t2 + b + 2 * i + 1}')
            out.append(mk(f's_mov_b64 exec, {M_Q2}\n' +
                          '\n'.join(f'ds_write_b64 {vPQw}, {vr(pq + 2 * gq, 2)} offset:{1536 + (32 * rt + 8 * gq) * 2}' for gq in range(4)) +
                          '\ns_mov_b64 exec, -1'))
            for j in range(2):
                c1 = '0' if (rt == 0 and j == 0) else vr(D1, 16)
                c3 = '0' if (rt == 0 and j == 0) else vr(D3, 16)
                out += mk(f'v_mfma_f32_32x32x16_bf16 {vr(D1, 16)}, {vr(t1 + 4 * j, 4)}, {vr(t2 + 4 * j, 4)}, {c1}')
                out += mk(f'v_mfma_f32_32x32x16_bf16 {vr(D3, 16)}, {vr(t1 + 4 * j, 4)}, {vr(ones, 4)}, {c3}')
        return out

    def gate_finish(self):
        t = TMP + 13
        return [mk(f'ds_read_b32 v{t}, {vGR}'),
                mk(f'v_mul_f32 v{t}, {NLOG2E}, v{t}'),
                mk(f'v_exp_f32 v{t}, v{t}'),
                mk(f'v_add_f32 v{t}, 1.0, v{t}'),
                mk(f'v_rcp_f32 v{t}, v{t}'),
                mk(f'ds_write_b32 {vGR}, v{t}')]

    def kv_merge_write(self):
        D1, D3 = SET_S, SET_S + 16
        out = []
        for r in range(12):
            out += mk(f'v_cndmask_b32 v{D1 + r}, v{D1 + r}, v{D3 + r}, {M_Z}')
        for gi in range(3):
            tok = Token('lg')
            out.append(mk(f'ds_write_b128 {vKW}, {vr(D1 + 4 * gi, 4)} offset:{gi * 1024}', tok=tok))
        return out, tok

    def kv_sum_store(self):
        a, b = TMP + 8, TMP + 12
        gs = [mk(f'''s_min_u32 {sT}, {sWave}, 2
                     s_lshl_b32 {sT}, {sT}, 10
                     s_add_u32 {sT}, {sT}, {L_KVW}
                     v_add_u32 {vKR}, {sT}, {vLane16}'''),
              mk(f'''ds_read_b128 {vr(a, 4)}, {vKR}
                     ds_read_b128 {vr(b, 4)}, {vKR} offset:3072'''), [], []]
        for wv in (1, 2, 3):
            gs.append(mk('\n'.join(f'v_add_f32 v{a + i}, v{a + i}, v{b + i}' for i in range(4))))
            if wv < 3:
                gs += [mk(f'ds_read_b128 {vr(b, 4)}, {vKR} offset:{(wv + 1) * 3072}'), [], []]
        tok = Token('vm')
        gs.append(mk(f'buffer_store_dwordx4 {vr(a, 4)}, {vLane16}, {SRD_WS}, {sKVst} offen sc1', tok=tok))
        return gs, tok

    def set_flag(self, pre, saddr, srd=SRD_WS):
        return mk(f'''{pre}
                      s_mov_b64 exec, 1
                      buffer_store_dword {vOne}, off, {srd}, {saddr} sc1
                      s_mov_b64 exec, -1''')

    def poll_issue(self, reg, vaddr, srd, soff):
        return mk(f'buffer_load_dword {reg}, {vaddr}, {srd}, {soff} offen sc1')

    def poll_check(self, reg, vaddr, srd, soff, value, cmp='eq'):
        ok, lp = self.label('ok'), self.label('spin')
        head = mk(f'''v_cmp_{cmp}_u32 vcc, {value}, {reg}
                      s_cmp_eq_u64 vcc, exec
                      s_cbranch_scc1 {ok}''')
        P = Prog()
        P.raw(f'''s_mov_b32 {sCnt}, 0
                  {lp}:
                  buffer_load_dword {reg}, {vaddr}, {srd}, {soff} offen sc1
                  s_add_u32 {sCnt}, {sCnt}, 1
                  s_waitcnt vmcnt(0)
                  v_cmp_{cmp}_u32 vcc, {value}, {reg}
                  s_nop 4
                  s_cmp_ge_u32 {sCnt}, 0x40000
                  s_cbranch_scc1 {ok}
                  s_cmp_eq_u64 vcc, exec
                  s_cbranch_scc0 {lp}''')
        return head + P.ins + mk(f'{ok}:')

    def pack_loads(self):
        gs = []
        for i in range(9):
            tok = Token('vm')
            gs += [mk(f'''s_add_u32 m0, {sPKlds}, {i * 1024}
                          s_add_u32 {sT}, {sPKsrc}, {i * 128}
                          buffer_load_dwordx4 {vPKs}, {SRD_PKS}, {sT} offen lds''', tok=tok), []]
        return gs, tok

    def pack_stores(self):
        gs = []
        for i in range(9):
            b = TMP + 8 + (i % 2) * 4
            gs.append(mk(f'''ds_read_b64_tr_b16 {vr(b, 2)}, {vPKr} offset:{i * 1024}
                             ds_read_b64_tr_b16 {vr(b + 2, 2)}, {vPKr} offset:{i * 1024 + 512}'''))
            if i > 0:
                pb = TMP + 8 + ((i - 1) % 2) * 4
                gs.append(mk(f'''s_add_u32 {sT}, {sPKdst}, {(i - 1) * 4096}
                                 buffer_store_dwordx4 {vr(pb, 4)}, {vLane16}, {SRD_PKD}, {sT} offen sc1'''))
            gs.append([])
        tok = Token('vm')
        gs.append(mk(f'''s_add_u32 {sT}, {sPKdst}, {8 * 4096}
                         buffer_store_dwordx4 {vr(TMP + 8, 4)}, {vLane16}, {SRD_PKD}, {sT} offen sc1''', tok=tok))
        return gs, tok

    def w2_groups(self, S):
        gs = []
        if S < 10:
            z = sZ[S % 4]
            for n0, n1 in ((0, 4), (4, 8), (8, 9)):
                gs.append(mk(f's_add_u32 {sT}, {sW2}, {4 * S * WP_T + n0 * 1024}'))
                gs.append(mk(f's_add_u32 m0, {z}, {n0 * 1024}'))
                for nf in range(n0, n1):
                    tok = Token('vm')
                    gs.append(mk(f'buffer_load_dwordx4 {vLane16}, {SRD_WS}, {sT} offen offset:{(nf - n0) * 1024} sc1 lds', tok=tok))
        else:
            slot = P2_SLOTS[S % 4][0]
            gs.append(mk(f'''s_mul_i32 {sT3}, {sWave}, {WP_T}
                             s_sub_u32 {sT3}, {sW2}, {sT3}
                             s_lshr_b32 {sT}, {sWave}, 1
                             s_mul_i32 {sT}, {sT}, {WP_T}
                             s_add_u32 {sT3}, {sT3}, {sT}'''))
            gs.append(mk(f'''s_and_b32 {sT}, {sWave}, 1
                             s_lshl_b32 {sT}, {sT}, 12
                             s_add_u32 {sT3}, {sT3}, {sT}
                             s_add_u32 {sT3}, {sT3}, {40 * WP_T}'''))
            gs.append(mk(f'''s_lshr_b32 {sCnt}, {sWave}, 1
                             s_mul_i32 {sCnt}, {sCnt}, 9216
                             s_add_u32 {sCnt}, {sCnt}, {sT}
                             s_add_u32 m0, {sCnt}, {slot}'''))
            for ii in range(4):
                gs.append(mk(f'buffer_load_dwordx4 {vLane16}, {SRD_WS}, {sT3} offen offset:{ii * 1024} sc1 lds'))
            tok = Token('vm')
            gs.append(mk(f'''s_add_u32 m0, {sCnt}, {slot + 4096}
                             s_add_u32 {sT}, {sT3}, 4096
                             buffer_load_dwordx4 {vLane16}, {SRD_WS}, {sT} offen sc1 lds''', tok=tok))
        self.w2tok[S] = tok
        return gs

    def bar_events(self, s):
        vm, lg = [self.stok[s]], []
        if s in self.gtok:
            lg.append(self.gtok[s])
        if s == 10:
            vm.append(self.pkltok)
        if s == 11:
            vm.append(self.ztok)
        if s == 23:
            vm += [self.h0tok, self.pkstok]
        if s == 28:
            lg.append(self.kvwtok)
        if s == 30:
            vm.append(self.kvstok)
        return vm, lg

    def post_bar(self, s):
        g = []
        pf = self.o.get('pf2', 1)
        if s == 7:
            gl, self.pkltok = self.pack_loads()
            g += gl
        if s == 10:
            gl, self.pkstok = self.pack_stores()
            g += gl
        if s == 11:
            g.append(mk(f'''s_cmp_eq_u32 {sWave}, 0
                            s_cselect_b32 {sT}, {sArr}, 0x1000
                            s_mov_b64 exec, 1
                            buffer_atomic_add {vOne}, off, {SRD_DBG}, {sT} sc1
                            s_mov_b64 exec, -1'''))
        if s == self.o.get('pfq', 0) and s > 0:
            g.append(self.qkv_pf(vPoll))
        if s == self.o.get('pf2at', 4) and pf:
            g.append(self.slab_pf(SRD_WG, f's_lshl_b32 {sT2}, {sNg}, 8\ns_add_u32 {sT2}, {sT2}, 128', vPoll))
            g.append(self.slab_pf(SRD_WU, f's_lshl_b32 {sT2}, {sNg}, 8\ns_add_u32 {sT2}, {sT2}, 128', vPoll))
            gg = mk(f'''s_mul_i32 {sT}, {sMt}, 72
                        s_and_b32 {sT2}, {sNg}, 3
                        s_mul_i32 {sT2}, {sT2}, 18
                        s_add_u32 {sT}, {sT}, {sT2}
                        s_and_b32 {sT2}, {sWave}, 1
                        s_mul_i32 {sT2}, {sT2}, 9
                        s_add_u32 {sT}, {sT}, {sT2}
                        s_mul_i32 {sT}, {sT}, 9216
                        s_lshr_b32 {sT2}, {sNg}, 2
                        s_lshl_b32 {sT2}, {sT2}, 7
                        s_add_u32 {sT}, {sT}, {sT2}
                        s_add_u32 {sT}, {sT}, 8192
                        v_min_u32 {vPoll}, 8, {vLane}
                        v_mul_u32_u24 {vPoll}, 9216, {vPoll}
                        buffer_load_dword {vDum}, {vPoll}, {SRD_PC}, {sT} offen''')
            gg[-1].notrack = True
            g.append(gg)
        if s == 21:
            g.append(mk(f'v_lshlrev_b32 {vFe}, 2, {vLane}'))
            g.append(self.poll_issue(vPoll, vFe, SRD_DBG, '0'))
        if s == 22:
            g.append(self.poll_check(vPoll, vFe, SRD_DBG, '0', '4', 'le'))
        if s == 23:
            g.append(self.set_flag(f's_lshl_b32 {sT3}, {sJj}, 2\ns_add_u32 {sT3}, {sT3}, {sFlH}', sT3))
            g.append(self.set_flag('', sPKfl, SRD_PKD))
        if s == 28:
            gl, self.kvstok = self.kv_sum_store()
            g += gl
        if s == 26:
            g.append(mk(f'''s_mul_i32 {sT}, {sWave}, 9216
                            s_add_u32 {sZ[0]}, {sT}, {88 * K}
                            s_mov_b32 {sZ[1]}, {sT}
                            s_add_u32 {sZ[2]}, {sT}, {124 * K}'''))
            g.append(mk(f'''s_cmp_ge_u32 {sWave}, 2
                            s_cselect_b32 {sZ[3]}, {7 * K}, 0
                            s_add_u32 {sZ[3]}, {sZ[3]}, {sZ[1]}
                            s_add_u32 {sZ[3]}, {sZ[3]}, {36 * K}'''))
            g.append(mk(f'''s_mul_i32 {sT}, {sWave}, {WP_T}
                            s_add_u32 {sW2}, {sW2}, {sT}'''))
            g.append(mk(f'''v_min_u32 {vFa}, 41, {vLane}
                            v_lshrrev_b32 {vFb}, 5, {vFa}
                            v_and_b32 {vFa}, 31, {vFa}
                            v_lshlrev_b32 {vFa}, 2, {vFa}'''))
            g.append(mk(f'''v_lshl_add_u32 {vFa}, {vFb}, 9, {vFa}
                            v_and_b32 {vFb}, 7, {vLane}
                            v_lshlrev_b32 {vFb}, 2, {vFb}'''))
        if s == 27:
            g.append(self.poll_issue(vPoll, vFa, SRD_WS, sFlPK))
            g.append(self.poll_issue(vFd, vFb, SRD_WS, sFlH))
        if s == 29:
            g.append(self.poll_check(vPoll, vFa, SRD_WS, sFlPK, '1'))
            g += self.w2_groups(0)
        if s == 30:
            g.append(self.set_flag(f's_lshl_b32 {sT3}, {sMt}, 2\ns_add_u32 {sT3}, {sT3}, {sFlKV}', sT3))
        if s == 31:
            g.append(self.poll_check(vFd, vFb, SRD_WS, sFlH, '1'))
        if s == 32:
            g.append(self.poll_issue(vFc, vFb, SRD_WS, sFlKV))
        if s == 33:
            g += self.w2_groups(1)
            g.append(self.poll_check(vFc, vFb, SRD_WS, sFlKV, '1'))
            for p in range(8):
                g.append(mk(f'''s_add_u32 {sT}, {sKVld}, {p * 3072}
                                buffer_load_dwordx4 {vr(SET_B + 32 + 4 * p, 4)}, {vLane16}, {SRD_WS}, {sT} offen sc1'''))
        if s == 35:
            g += self.o_setup()
            b = SET_B + 32
            for p in range(1, 8):
                g.append(mk('\n'.join(f'v_add_f32 v{b + i}, v{b + i}, v{b + 4 * p + i}' for i in range(4))))
            self.kvsumtok = Token('lg')
            g.append(mk(f'''s_min_u32 {sT}, {sWave}, 2
                            s_lshl_b32 {sT}, {sT}, 10
                            s_add_u32 {sT}, {sT}, {L_KVS}
                            v_add_u32 {vKR}, {sT}, {vLane16}
                            ds_write_b128 {vKR}, {vr(b, 4)}''', tok=self.kvsumtok))
        return g

    def o_setup(self):
        t0, t1 = f'v{TMP + 6}', f'v{TMP + 7}'
        g = [mk(f'''s_mul_i32 {sT}, {sJj}, 3
                    v_lshrrev_b32 {t0}, 5, {vLane}
                    v_add_u32 {t0}, {sT}, {t0}
                    v_lshrrev_b32 {t1}, 2, {t0}
                    v_lshlrev_b32 {t1}, 11, {t1}'''),
             mk(f'''v_and_b32 {t0}, 3, {t0}
                    v_lshl_add_u32 {t0}, {t0}, 8, {t1}
                    v_and_b32 {t1}, 0xfffffdff, {vHS}
                    v_add_u32 {vFa}, {t0}, {t1}'''),
             mk(f'''s_add_u32 {sT}, {sT}, 0
                    s_mul_i32 {sT}, {sJj}, 3
                    s_add_u32 {sT}, {sT}, 2
                    s_lshr_b32 {sT3}, {sT}, 2
                    s_lshl_b32 {sT3}, {sT3}, 11
                    s_and_b32 {sT}, {sT}, 3
                    s_lshl_b32 {sT}, {sT}, 8
                    s_add_u32 {sT}, {sT}, {sT3}
                    v_add_u32 {vFe}, {sT}, {t1}''')]
        return g

    def p1(self):
        o, P = self.o, self.P
        for g in self.x_reads(0):
            P.add(g)
        vm, lg = self.bar_events(0)
        self.cur = 'b0'
        P.add(self.barrier(vm, lg))
        for phi in range(4):
            P.add(self.frag_load(phi))
        bar_at = {self.first_frag(s) - 4: s for s in range(1, 36)}
        self.w2tok = {}
        side, hi = [], []
        for ph, f0, f1, s0 in self.PH:
            fills, first, last = [], 6, None
            budget = o.get('budget', 24)
            if ph == 'G0':
                fills, first, last = self.deferred, 1, 120
            elif ph == 'U0':
                fills = self.silu_stream(SET_A, range(0, 64, 4))
            elif ph == 'QKV':
                fills, self.h0tok = self.h_stream(0, SET_B)
            elif ph == 'G1':
                setup = mk(f'''s_lshl_b32 {sT2}, {sWave}, 8
                               s_add_u32 {sT2}, {sT2}, {L_G}
                               v_lshrrev_b32 {vGL}, 5, {vLane}
                               v_lshlrev_b32 {vGL}, 4, {vGL}
                               v_add_u32 {vGL}, {sT2}, {vGL}
                               v_lshlrev_b32 {vGR}, 2, {vLane}
                               v_add_u32 {vGR}, {sT2}, {vGR}
                               s_mul_i32 {sT2}, {sWave}, 3072
                               s_add_u32 {sT2}, {sT2}, {L_KVW}
                               v_add_u32 {vKW}, {sT2}, {vLane16}''')
                kvw, self.kvwtok = self.kv_merge_write()
                fills = [setup] + self.attn_stream() + self.gate_finish() + kvw
                first = 4
            elif ph == 'U1':
                fills = self.silu_stream(SET_B, list(range(32, 64, 4)) + list(range(0, 32, 4)))
            elif ph == 'PC':
                fills, self.h1tok = self.h_stream(1, SET_A)
                first, last = o.get('pcfirst', 12), o.get('pclast', 56)
            mains = []
            for phi in range(f0, f1):
                for rt in range(2):
                    m = list(self.mfma(phi, rt))
                    if rt == 1:
                        if phi in bar_at:
                            s = bar_at[phi]
                            vm, lg = self.bar_events(s)
                            self.cur = f'b{s}'
                            m += self.barrier(vm, lg)
                            for st in self.issue[s]:
                                hi += self.stage_groups(st)
                            side += self.post_bar(s)
                        if phi + 4 in (144, 216, 360):
                            a0, a1 = {144: (vTq0, vTq1), 216: (vTr0, vTr1), 360: (vTp, vTp)}[phi + 4]
                            m += mk(f'v_add_u32 {vHi0}, 0x10000, {a0}\nv_add_u32 {vHi1}, 0x10000, {a1}')
                        if phi + 4 < 396:
                            m += self.frag_load(phi + 4)
                        if ph == 'PC' and 0 <= phi - 362 < o.get('lead', 4):
                            m += self.h2_load(phi - 362)
                    if ph == 'G0':
                        idx = 2 * phi + rt
                        ck = idx // 16 + 1
                        if idx % 16 == 0 and ck <= 8:
                            hi = self.x_reads(ck) + hi
                        refill = 3 if idx == 2 else (ck + 3 if (idx % 16 == 10 and ck + 3 <= 8) else None)
                        if refill is not None:
                            gl = [self.x_dma(refill, i) for i in range(8)]
                            gl[0][0].need_lgkm = [self.xrtok[refill - 3]]
                            hi += gl
                    k = 0
                    while (hi or side) and k < (2 if ph == 'G0' else 1):
                        m += hi.pop(0) if hi else side.pop(0)
                        k += 1
                    mains.append(m)
            if ph == 'U0':
                assert not side, len(side)
            if ph == 'PC':
                assert not hi
                while side:
                    mains[-1] += side.pop(0)
            P.add(interleave(mains, fills, budget, first=first, last=last))
            self.stamp()
            if o.get('stop') == ph:
                return False
        return True

    def h2_load(self, t):
        r = (t % HRING) * 8
        return mk(f'''s_add_u32 {sT2}, {sH2}, {t * 2048}
                      buffer_load_dwordx4 a[{r}:{r + 3}], {vLane16}, {SRD_WS}, {sT2} offen sc1
                      buffer_load_dwordx4 a[{r + 4}:{r + 7}], {vLane16}, {SRD_WS}, {sT2} offen offset:1024 sc1''')

    def tail(self):
        e, P = self.e, self.P
        lead = self.o.get('lead', 4)
        S = SET_S
        self.cur = 'tail_kv'
        P.add(self.barrier(lg=[self.kvsumtok]))
        e(f'''v_add_u32 {vKR}, {L_KVS}, {vLane16}
              ds_read_b128 {vr(S + 16, 4)}, {vKR}
              ds_read_b128 {vr(S + 20, 4)}, {vKR} offset:1024
              ds_read_b128 {vr(S + 24, 4)}, {vKR} offset:2048''')
        for rt in range(2):
            for ks in range(2):
                for p in range(2):
                    r = SET_A + rt * 8 + ks * 4 + p * 2
                    e(f'ds_read_b64_tr_b16 {vr(r, 2)}, {vPQr} offset:{(16 * ks + 8 * p) * 128 + rt * 64}')
        e(f'''s_lshl_b32 {sT}, {sWave}, 8
              s_add_u32 {sT}, {sT}, {L_G}
              v_and_b32 {vKW}, 31, {vLane}
              v_lshlrev_b32 {vKW}, 2, {vKW}
              v_add_u32 {vKW}, {sT}, {vKW}
              ds_read_b32 v{TMP + 4}, {vKW}
              ds_read_b32 v{TMP + 5}, {vKW} offset:128''')
        for i in range(6):
            e(f'v_cvt_pk_bf16_f32 v{S + i}, v{S + 16 + 2 * i}, v{S + 17 + 2 * i}')
        e(f'v_mov_b32 v{S + 6}, 0\nv_mov_b32 v{S + 7}, 0')
        for rt in range(2):
            D = SET_A + 16 + 16 * rt
            e(f'v_mfma_f32_32x32x16_bf16 {vr(D, 16)}, {vr(S, 4)}, {vr(SET_A + rt * 8, 4)}, 0')
            e(f'v_mfma_f32_32x32x16_bf16 {vr(D, 16)}, {vr(S + 4, 4)}, {vr(SET_A + rt * 8 + 4, 4)}, {vr(D, 16)}')
        hb = TMP + 8
        for rt in range(2):
            d = self.acc('PC', 0, rt)
            for b4 in range(0, 8, 4):
                t = [TMP + i for i in range(4)]
                g = [d + b4 + i for i in range(4)]
                for i in range(4): e(f'v_mul_f32 v{t[i]}, {NLOG2E}, v{g[i]}')
                for i in range(4): e(f'v_exp_f32 v{t[i]}, v{t[i]}')
                for i in range(4): e(f'v_add_f32 v{t[i]}, 1.0, v{t[i]}')
                for i in range(4): e(f'v_rcp_f32 v{t[i]}, v{t[i]}')
                for i in range(4): e(f'v_mul_f32 v{t[i]}, v{g[i]}, v{t[i]}')
                for i in range(4): e(f'v_mul_f32 v{t[i]}, v{t[i]}, v{g[i] + 8}')
                for i in range(2): e(f'v_cvt_pk_bf16_f32 v{hb + rt * 4 + b4 // 2 + i}, v{t[2 * i]}, v{t[2 * i + 1]}')
            e(f's_add_u32 {sT}, {sHP}, {rt * HB_W}')
            e(f'buffer_store_dwordx4 {vr(hb + rt * 4, 4)}, {vHP}, {SRD_WS}, {sT} offen sc1')
        for rt in range(2):
            D = SET_A + 16 + 16 * rt
            f, t = TMP + 6, [TMP + i for i in range(4)]
            pk = SET_S + 8 + rt * 8
            e(f'''v_cndmask_b32 v{f}, v{D + 8}, v{D + 10}, {M_LO}
                  v_add_f32 v{f}, {EPS}, v{f}
                  v_rcp_f32 v{f}, v{f}
                  s_add_u32 {sT}, {sOst}, {36 * 2048 + rt * HB_W}
                  v_mul_f32 v{f}, v{f}, v{TMP + 4 + rt}''')
            for grp in range(2):
                for i in range(4):
                    e(f'v_mul_f32 v{t[i]}, v{f}, v{D + 4 * grp + i}')
                e(f'''v_cvt_pk_bf16_f32 v{pk + 2 * grp}, v{t[0]}, v{t[1]}
                      v_cvt_pk_bf16_f32 v{pk + 2 * grp + 1}, v{t[2]}, v{t[3]}''')
            e(f'''v_mul_f32 v{t[0]}, v{f}, v{D + 8}
                  v_mul_f32 v{t[1]}, v{f}, v{D + 9}
                  v_mov_b32 v{pk + 5}, 0
                  v_mov_b32 v{pk + 6}, 0
                  v_mov_b32 v{pk + 7}, 0
                  v_cvt_pk_bf16_f32 v{pk + 4}, v{t[0]}, v{t[1]}
                  v_permlane32_swap_b32 v{pk}, v{pk + 2}
                  v_permlane32_swap_b32 v{pk + 1}, v{pk + 3}''')
            e(f'buffer_store_dwordx4 {vr(pk, 4)}, {vFa}, {SRD_WS}, {sT} offen sc1')
            e('s_mov_b32 exec_hi, 0')
            self.otok = Token('vm')
            e(f'buffer_store_dwordx4 {vr(pk + 4, 4)}, {vFe}, {SRD_WS}, {sT} offen sc1', tok=self.otok)
            e('s_mov_b64 exec, -1')

    def w2_read(self, t, nf, slot):
        addr = P2_SLOTS[(t // 4) % 4][t % 4] + nf * 1024
        base = (vLane16, vHi0, vHi1)[addr >> 16]
        b = WF2 + slot * 4
        return mk(f'ds_read_b128 {vr(b, 4)}, {base} offset:{addr & 0xffff}')

    def p2(self):
        e, P, o = self.e, self.P, self.o
        lead = o.get('lead', 4)
        e(f'''v_add_u32 {vHi0}, 0x10000, {vLane16}
              v_add_u32 {vHi1}, 0x20000, {vLane16}''')
        seq = [(t, nf) for t in range(NT) for nf in range(9)]
        side = []

        def bar2(S):
            vm = [self.w2tok[S]]
            if S == self.o.get('a1at', 2):
                vm.append(self.h1tok)
            if S == self.o.get('bat', 4):
                vm.append(self.otok)
            self.cur = f'p2_{S}'
            g = self.barrier(vm)
            post = []
            if S == self.o.get('a1at', 2):
                post.append(self.set_flag(f's_lshl_b32 {sT3}, {sJj}, 2\ns_add_u32 {sT3}, {sT3}, {sFlH}\ns_add_u32 {sT3}, {sT3}, 32', sT3))
            if S == self.o.get('bat', 4):
                post.append(self.set_flag(f's_lshl_b32 {sT3}, {sJj}, 2\ns_add_u32 {sT3}, {sT3}, {sFlH}\ns_add_u32 {sT3}, {sT3}, 64', sT3))
            if S + 2 <= 10:
                post += self.w2_groups(S + 2)
            return g, post
        g, post = bar2(0)
        P.add(g)
        for i in range(8):
            P.add(self.w2_read(*seq[i], i % 8))
        side += post
        e(f'''s_add_u32 s100, {sFlH}, 32
              s_add_u32 s101, {sFlH}, 64''')
        for i, (t, nf) in enumerate(seq):
            for rt in range(2):
                base = ACC_B if t < 36 else ACC_A
                d = base + (nf * 2 + rt) * 4
                c = '0' if t in (0, 36) else vr(d, 4)
                hr = (t % HRING) * 8 + rt * 4
                m = mk(f'v_mfma_f32_16x16x32_bf16 {vr(d, 4)}, {vr(WF2 + (i % 8) * 4, 4)}, a[{hr}:{hr + 3}], {c}')
                if rt == 1:
                    nxt = i + 8
                    if nxt < len(seq):
                        tn, nn = seq[nxt]
                        if nn == 0 and tn % 4 == 0:
                            g, post = bar2(tn // 4)
                            m += g
                            side += post
                        m += self.w2_read(tn, nn, nxt % 8)
                elif side:
                    m += side.pop(0)
                P.add(m)
            if nf == 8:
                tn = t + lead
                if tn == 14: side.append(self.poll_issue(vFc, vFb, SRD_WS, 's100'))
                if tn == 30: side.append(self.poll_issue(vFc, vFb, SRD_WS, 's101'))
                if tn == 16: P.add(self.poll_check(vFc, vFb, SRD_WS, 's100', '1'))
                if tn == 32: P.add(self.poll_check(vFc, vFb, SRD_WS, 's101', '1'))
                if tn < NT:
                    P.add(self.h2_load(tn))
        assert not side

    def final(self):
        e, P = self.e, self.P
        T = [TMP + i for i in range(16)]
        e(f'''s_and_b32 {sT}, {sJj}, 1
              s_lshl_b32 {sT}, {sT}, 9
              s_lshl_b32 {sT2}, {sWave}, 7
              s_add_u32 {sT}, {sT}, {sT2}
              s_add_u32 {sT}, {sT}, {L_G}
              v_and_b32 v{T[2]}, 15, {vLane}
              v_lshlrev_b32 v{T[3]}, 2, v{T[2]}
              v_add_u32 v{T[3]}, {sT}, v{T[3]}
              ds_read_b32 v{T[0]}, v{T[3]}
              ds_read_b32 v{T[1]}, v{T[3]} offset:64
              v_sub_f32 v{T[0]}, 1.0, v{T[0]}
              v_sub_f32 v{T[1]}, 1.0, v{T[1]}''')
        own, done = self.label('own'), self.label('put')
        self.cur = 'p2_end'
        P.add(self.cstamp())
        for ti in range(18):
            for i in range(4):
                r = ti * 4 + i
                e(f'v_fma_f32 v{ACC_B + r}, v{ACC_B + r}, v{T[ti % 2]}, v{ACC_A + r}')
        e(f's_cmp_eq_u32 {sWave}, {sKq}')
        e(f's_cbranch_scc1 {own}')
        txt = ''
        for nf in range(9):
            b = ACC_A + 4 * nf
            for rt in range(2):
                r = ACC_B + (nf * 2 + rt) * 4
                txt += f'v_cvt_pk_bf16_f32 v{b + 2 * rt}, v{r}, v{r + 1}\nv_cvt_pk_bf16_f32 v{b + 2 * rt + 1}, v{r + 2}, v{r + 3}\n'
            if nf % 4 == 0:
                txt += f's_add_u32 {sT}, {sYst}, {nf * 1024}\n'
            txt += f'buffer_store_dwordx4 {vr(b, 4)}, {vLane16}, {SRD_WS}, {sT} offen offset:{(nf % 4) * 1024} sc1\n'
        txt += f's_branch {done}\n{own}:\n'
        for ti in range(18):
            txt += f'ds_write_b128 {vHi0}, {vr(ACC_B + 4 * ti, 4)} offset:{L_OWN - 0x10000 + ti * 1024}\n'
        txt += f'{done}:\n'
        P.raw(txt)
        e('s_waitcnt lgkmcnt(0)')
        e('s_barrier')
        e(f'''s_lshl_b32 {sT3}, {sKq}, 9
              s_add_u32 {sT3}, {sT3}, {sFlY}
              v_and_b32 {vFb}, 3, {vLane}
              v_lshlrev_b32 {vFb}, 2, {vFb}
              v_mul_u32_u24 v{T[5]}, 1152, v{T[2]}
              v_lshrrev_b32 v{T[6]}, 4, {vLane}
              v_lshl_add_u32 v{T[5]}, v{T[6]}, 3, v{T[5]}
              s_lshl_b32 {sT}, {sWave}, 5
              s_add_u32 s100, {sOut}, {sT}''')
        srcs = ['s4', 's5', 's6']
        for i in range(3):
            e(f'''s_add_u32 {sT}, {sKq}, {i + 1}
                  s_and_b32 {sT}, {sT}, 3
                  s_mul_i32 {sT}, {sT}, {YP_SLOT}
                  s_add_u32 {srcs[i]}, {sT}, {sYld}
                  s_add_u32 {srcs[i]}, {srcs[i]}, {sLw1}''')
        e(f'''s_lshl_b32 {sT}, {sWave}, 11
              v_add_u32 v{T[7]}, {sT}, {vHi0}
              s_lshl_b32 {sT2}, {sWave}, 9
              s_lshl_b32 {sT}, {sKq}, 2
              s_add_u32 {sT}, {sT}, {sT2}
              s_add_u32 {sT}, {sT}, {sFlY}''')
        e('s_waitcnt vmcnt(0)')
        self.cur = 'y_stored'
        P.add(self.cstamp())
        e(f'''s_mov_b64 exec, 1
              buffer_store_dword {vOne}, off, {SRD_WS}, {sT} sc1
              s_mov_b64 exec, -1''')
        P.add(self.poll_issue(vPoll, vFb, SRD_WS, sT3))
        P.add(self.poll_check(vPoll, vFb, SRD_WS, sT3, '1'))
        self.cur = 'y_flagged'
        P.add(self.cstamp())

        def unit_loads(i, b):
            if i < 2:
                for j in range(3):
                    e(f's_add_u32 {sT}, {srcs[j]}, {i * 4096}')
                    e(f'buffer_load_dwordx4 {vr(b + 4 * j, 4)}, {vLane16}, {SRD_WS}, {sT} offen sc1')
                e(f'ds_read_b128 {vr(b + 12, 4)}, v{T[7]} offset:{L_OWN - 0x10000 + i * 8192}')
                e(f'ds_read_b128 {vr(b + 16, 4)}, v{T[7]} offset:{L_OWN - 0x10000 + i * 8192 + 1024}')
            else:
                for j in range(3):
                    e(f's_add_u32 {sT}, {srcs[j]}, 8192')
                    e(f'buffer_load_dwordx4 {vr(b + 4 * j, 4)}, {vLane16}, {SRD_WS}, {sT} offen sc1')
                e(f'ds_read_b128 {vr(b + 12, 4)}, v{T[7]} offset:{L_OWN - 0x10000 + 16384}')
                e(f'ds_read_b128 {vr(b + 16, 4)}, v{T[7]} offset:{L_OWN - 0x10000 + 17408}')

        def unit_sum(i, b):
            t0, t1 = T[8], T[9]
            for j in range(3):
                for rt in range(2):
                    for dd in range(2):
                        s = b + 4 * j + 2 * rt + dd
                        a = b + 12 + 4 * rt + 2 * dd
                        e(f'''v_lshlrev_b32 v{t0}, 16, v{s}
                              v_and_b32 v{t1}, 0xffff0000, v{s}
                              v_add_f32 v{a}, v{a}, v{t0}
                              v_add_f32 v{a + 1}, v{a + 1}, v{t1}''')
            for rt in range(2):
                a = b + 12 + 4 * rt
                e(f'''v_cvt_pk_bf16_f32 v{b + 2 * rt}, v{a}, v{a + 1}
                      v_cvt_pk_bf16_f32 v{b + 2 * rt + 1}, v{a + 2}, v{a + 3}
                      s_add_u32 {sT}, s100, {rt * 16 * 1152 + (i * 128 if i < 2 else 256)}
                      buffer_store_dwordx2 {vr(b + 2 * rt, 2)}, v{T[5]}, {SRD_OUT}, {sT} offen''')
        unit_loads(0, 0)
        unit_loads(1, 20)
        skip = self.label('skip')
        e(f's_cmp_lg_u32 {sWave}, 0')
        e(f's_cbranch_scc1 {skip}')
        txt = ''
        b = 40
        for j in range(3):
            txt += f's_add_u32 {sT}, {srcs[j]}, 8192\nbuffer_load_dwordx4 {vr(b + 4 * j, 4)}, {vLane16}, {SRD_WS}, {sT} offen sc1\n'
        txt += f'ds_read_b128 {vr(b + 12, 4)}, v{T[7]} offset:{L_OWN - 0x10000 + 16384}\n'
        txt += f'ds_read_b128 {vr(b + 16, 4)}, v{T[7]} offset:{L_OWN - 0x10000 + 17408}\n'
        txt += 's_waitcnt vmcnt(0) lgkmcnt(0)\n'
        t0, t1 = T[8], T[9]
        for j in range(3):
            for rt in range(2):
                for dd in range(2):
                    s = b + 4 * j + 2 * rt + dd
                    a = b + 12 + 4 * rt + 2 * dd
                    txt += f'v_lshlrev_b32 v{t0}, 16, v{s}\nv_and_b32 v{t1}, 0xffff0000, v{s}\nv_add_f32 v{a}, v{a}, v{t0}\nv_add_f32 v{a + 1}, v{a + 1}, v{t1}\n'
        for rt in range(2):
            a = b + 12 + 4 * rt
            txt += f'v_cvt_pk_bf16_f32 v{b + 2 * rt}, v{a}, v{a + 1}\nv_cvt_pk_bf16_f32 v{b + 2 * rt + 1}, v{a + 2}, v{a + 3}\n'
            txt += f's_add_u32 {sT}, s100, {rt * 16 * 1152 + 256}\nbuffer_store_dwordx2 {vr(b + 2 * rt, 2)}, v{T[5]}, {SRD_OUT}, {sT} offen\n'
        txt += 's_waitcnt vmcnt(0)\n'
        txt += f'{skip}:\n'
        P.raw(txt)
        unit_sum(0, 0)
        unit_sum(1, 20)

    def build(self):
        o = self.o
        self.plan_slots()
        self.prologue()
        go = self.p1()
        if go:
            self.tail()
            self.stamp()
            if o.get('stop') == 'tail':
                go = False
        if go:
            self.p2()
            self.stamp()
            self.final()
            self.stamp()
        self.e('s_waitcnt vmcnt(0) lgkmcnt(0)')
        if o.get('bstamp'):
            self.cur = 'end'
            self.P.add(self.cstamp())
            self.P.raw('s_waitcnt lgkmcnt(0)')
            self.P.add(self.cstamp())
            self.e(f'''s_lshl_b32 {sT}, {sWave}, 8
                       s_lshl_b32 {sT2}, {sBsId}, 10
                       s_add_u32 {sT}, {sT}, {sT2}
                       s_add_u32 {sT}, {sT}, {TS}
                       v_lshlrev_b32 v0, 2, {vLane}
                       buffer_store_dword {vSt}, v0, {SRD_WS}, {sT} offen
                       s_waitcnt vmcnt(0)''')
            open('cs_names.txt', 'w').write(' '.join(self.cs_names))
        self.P.emit('L_end:')
        self.e('s_endpgm')
        if o.get('drop'):
            import re
            keep = []
            for I in self.P.ins:
                if re.search(o['drop'], I.text):
                    J = mk('s_nop 0')[0]
                    J.need_vm, J.need_lgkm = I.need_vm, I.need_lgkm
                    if I.tok is not None:
                        I.tok.done = True
                    keep.append(J)
                else:
                    keep.append(I)
            self.P.ins = keep
        ins, st, nn = finalize(self.P.ins)
        body = render(ins)
        head = open('cdna_kernels/%s.s.ref' % KNAME[:-7]).read().split('; Override')[0] if o.get('header', 1) else ''
        txt = head
        txt += f'; @launch grid=(256,1,1) block=(256,1,1) lds={LDS_BYTES}\n'
        txt += '.amdgcn_target "amdgcn-amd-amdhsa--gfx950"\n.text\n'
        txt += f'.globl {KNAME}\n.p2align 8\n.type {KNAME},@function\n{KNAME}:\n'
        txt += body
        txt += f'''.section .rodata,"a"
.p2align 6
.amdhsa_kernel {KNAME}
  .amdhsa_next_free_vgpr 512
  .amdhsa_next_free_sgpr 102
  .amdhsa_accum_offset 256
  .amdhsa_group_segment_fixed_size 0
  .amdhsa_kernarg_size 88
  .amdhsa_user_sgpr_count 2
  .amdhsa_user_sgpr_kernarg_segment_ptr 1
  .amdhsa_system_sgpr_workgroup_id_x 1
  .amdhsa_float_denorm_mode_32 3
.end_amdhsa_kernel
'''
        info = dict(n=len(ins), nops=nn, waits=st, mfma=sum(1 for i in ins if i.kind == 'mfma'))
        return txt, info


def main():
    opt = {}
    out = 'k.s'
    for a in sys.argv[1:]:
        if '=' in a:
            k, v = a.split('=', 1)
            opt[k] = int(v) if v.lstrip('-').isdigit() else v
        else:
            out = a
    txt, info = Gen(opt).build()
    open(out, 'w').write(txt)
    print(out, info, len(txt), 'bytes')


if __name__ == '__main__':
    main()
```
